```python
import torch

def _softmax(x, axis=-1):
    return torch.softmax(x, dim=axis)
def _gelu(x):
    return torch.nn.functional.gelu(x, approximate="tanh")
def _silu(x):
    return torch.nn.functional.silu(x)
def _sigmoid(x):
    return torch.sigmoid(x)
def _layernorm(x, axis=-1, eps=1e-5):
    m = x.mean(dim=axis, keepdim=True)
    v = x.var(dim=axis, keepdim=True, unbiased=False)
    return (x - m) / torch.sqrt(v + eps)
def _scatter_add(tgt, idx, src, axis=0):
    return tgt.clone().index_add_(axis, idx, src)
def _segment_sum(src, seg, n):
    out = torch.zeros((n,) + src.shape[1:], dtype=src.dtype)
    return out.index_add_(0, seg, src)
def _pad(x, pw):
    flat = tuple(v for pair in reversed(pw) for v in pair)
    return torch.nn.functional.pad(x, flat)

kernel_name = 'concat_heads__gqa_block_cached__mha_block_cached__near_ridge'

def setup_inputs():

    _w = (lambda a: (lambda t: t.to(torch.bfloat16) if t.is_floating_point() else t)(torch.as_tensor(a)))
    def _A_setup():
        B, Sq, D = 8, 192, 640
        Hq, Hkv, Sk, Dh = 32, 32, 512, 128
        assert Hq % Hkv == 0, (Hq, Hkv)
        return {
            "x": _w((lambda *s: torch.randn(*s, dtype=torch.bfloat16) * 0.8)(B, Sq, D)),
            "k_cache": _w((lambda *s: torch.randn(*s, dtype=torch.bfloat16) * 0.8)(B, Hkv, Sk, Dh)),
            "v_cache": _w((lambda *s: torch.randn(*s, dtype=torch.bfloat16) * 0.05)(B, Hkv, Sk, Dh)),
            "wq": _w((lambda *s: torch.randn(*s, dtype=torch.bfloat16) * 0.8)(D, Hq * Dh) * (D ** -0.5)),
            "wo": _w((lambda *s: torch.randn(*s, dtype=torch.bfloat16) * 0.05)(Hq * Dh, D) * ((Hq * Dh) ** -0.5)),
        }
    _A_in = _A_setup()

    def _B_setup():
        B, Sq, D = 8, 192, 640
        H, Sk, Dh = 32, 512, 128
        return {
            "x": _w((lambda *s: torch.randn(*s, dtype=torch.bfloat16) * 0.8)(B, Sq, D)),
            "k_cache": _w((lambda *s: torch.randn(*s, dtype=torch.bfloat16) * 0.8)(B, H, Sk, Dh)),
            "v_cache": _w((lambda *s: torch.randn(*s, dtype=torch.bfloat16) * 0.05)(B, H, Sk, Dh)),
            "wq": _w((lambda *s: torch.randn(*s, dtype=torch.bfloat16) * 0.8)(D, H * Dh) * (D ** -0.5)),
            "wo": _w((lambda *s: torch.randn(*s, dtype=torch.bfloat16) * 0.05)(H * Dh, D) * ((H * Dh) ** -0.5)),
        }
    _B_in = _B_setup()

    return {
        "A_x": _A_in["x"],
        "A_k_cache": _A_in["k_cache"],
        "A_v_cache": _A_in["v_cache"],
        "A_wq": _A_in["wq"],
        "A_wo": _A_in["wo"],
        "B_x": _B_in["x"],
        "B_k_cache": _B_in["k_cache"],
        "B_v_cache": _B_in["v_cache"],
        "B_wq": _B_in["wq"],
        "B_wo": _B_in["wo"],
    }

def reference(A_x, A_k_cache, A_v_cache, A_wq, A_wo, B_x, B_k_cache, B_v_cache, B_wq, B_wo):
    def _A_ref(x, k_cache, v_cache, wq, wo):
        B, Sq, D = x.shape
        Hq, Dh = 32, 128
        Hkv = k_cache.shape[1]
        rep = Hq // Hkv
        q = (lambda x, *d: x.permute(*d))((x @ wq).reshape(B, Sq, Hq, Dh), 0, 2, 1, 3)
        k = (lambda x, n, axis: torch.repeat_interleave(x, n, dim=axis))(k_cache, rep, axis=1)
        v = (lambda x, n, axis: torch.repeat_interleave(x, n, dim=axis))(v_cache, rep, axis=1)
        scores = torch.einsum("bhqd,bhkd->bhqk", q, k) * (Dh ** -0.5)
        p = _softmax(scores, axis=-1)
        o = torch.einsum("bhqk,bhkd->bhqd", p, v)
        return (lambda x, *d: x.permute(*d))(o, 0, 2, 1, 3).reshape(B, Sq, Hq * Dh) @ wo

    def _B_ref(x, k_cache, v_cache, wq, wo):
        B, Sq, D = x.shape
        H, Dh = 32, 128
        q = (lambda x, *d: x.permute(*d))((x @ wq).reshape(B, Sq, H, Dh), 0, 2, 1, 3)
        scores = torch.einsum("bhqd,bhkd->bhqk", q, k_cache) * (Dh ** -0.5)
        p = _softmax(scores, axis=-1)
        o = torch.einsum("bhqk,bhkd->bhqd", p, v_cache)
        return (lambda x, *d: x.permute(*d))(o, 0, 2, 1, 3).reshape(B, Sq, H * Dh) @ wo

    a = _A_ref(A_x, A_k_cache, A_v_cache, A_wq, A_wo)
    b = _B_ref(B_x, B_k_cache, B_v_cache, B_wq, B_wo)
    return torch.concatenate([a, b], axis=-1)
```

```python
import sys

NAME = "concat_heads__gqa_block_cached__mha_block_cached__near_ridge"

class A:
    def __init__(self):
        self.L = []
    def __call__(self, s):
        self.L.append("    " + s)
    def lab(self, s):
        self.L.append(s + ":")
    def c(self, s):
        self.L.append("    ; " + s)
    def text(self):
        return "\n".join(self.L) + "\n"

def vr(b, n=4):
    return "v[%d:%d]" % (b, b + n - 1)
def sr(b, n=4):
    return "s[%d:%d]" % (b, b + n - 1)

WS_OF = 0
OF_BYTES = 2 * 96 * 128 * 1024
WS_WF = OF_BYTES
WF_BYTES = 2 * 40 * 128 * 1024
WS_BYTES = 268435456

SZ_X = 8 * 192 * 640 * 2
SZ_KV = 8 * 32 * 512 * 128 * 2
SZ_W = 640 * 4096 * 2
SZ_OUT = 8 * 192 * 1280 * 2

def srd(a, d, base, size):
    a("s_mov_b32 s%d, s%d" % (d, base))
    a("s_and_b32 s%d, s%d, 0xffff" % (d + 1, base + 1))
    a("s_mov_b32 s%d, 0x%x" % (d + 2, size))
    a("s_mov_b32 s%d, 0x00020000" % (d + 3))

def gen_k0(a):
    a.lab("wprep_kernel")
    a("s_cmp_ge_u32 s2, 256")
    a("s_cbranch_scc1 L_k0_end")
    a("s_lshr_b32 s3, s2, 7")
    a("s_and_b32 s4, s2, 127")
    a("s_mul_i32 s5, s3, 40")
    a("s_add_u32 s6, s0, s5")
    a("s_addc_u32 s7, s1, 0")
    a("s_load_dwordx2 s[8:9], s[6:7], 32")
    a("s_load_dwordx2 s[10:11], s[0:1], 96")
    a("v_lshrrev_b32 v1, 6, v0")
    a("v_and_b32 v0, 63, v0")
    a("s_nop 0")
    a("v_readfirstlane_b32 s12, v1")
    a("s_waitcnt lgkmcnt(0)")
    srd(a, 16, 8, SZ_W)
    srd(a, 20, 10, WS_BYTES)
    a("v_lshrrev_b32 v1, 4, v0")
    a("v_and_b32 v2, 15, v0")
    a("v_mul_u32_u24 v1, 5120, v1")
    a("v_lshl_add_u32 v1, v2, 4, v1")
    a("s_mul_i32 s13, s4, 40960")
    a("s_lshl_b32 s14, s12, 8")
    a("s_add_u32 s13, s13, s14")
    a("s_mul_i32 s15, s12, 8704")
    for P in range(8):
        a("s_add_u32 s24, s13, %d" % ((16 * (P // 4) + P % 4) * 1280))
        a("s_add_u32 m0, s15, %d" % (P * 1088))
        a("s_nop 0")
        a("buffer_load_dwordx4 v1, s[16:19], s24 offen lds")
    a("v_lshrrev_b32 v3, 5, v0")
    a("v_bfe_u32 v4, v0, 4, 1")
    a("v_bfe_u32 v5, v0, 2, 2")
    a("v_and_b32 v6, 3, v0")
    a("v_lshl_add_u32 v3, v3, 2, v5")
    a("v_mul_u32_u24 v3, 1088, v3")
    a("v_lshl_add_u32 v3, v4, 8, v3")
    a("v_lshl_add_u32 v3, v6, 3, v3")
    a("v_add_u32 v3, s15, v3")
    a("s_mul_i32 s25, s3, 40")
    a("s_lshl_b32 s26, s12, 3")
    a("s_add_u32 s25, s25, s26")
    a("s_lshl_b32 s25, s25, 7")
    a("s_add_u32 s25, s25, s4")
    a("s_lshl_b32 s25, s25, 10")
    a("s_add_u32 s25, s25, 0x%x" % WS_WF)
    a("v_lshlrev_b32 v7, 4, v0")
    a("s_waitcnt vmcnt(0)")
    for nt in range(8):
        a("ds_read_b64_tr_b16 %s, v3 offset:%d" % (vr(8 + 4 * nt, 2), nt * 32))
        a("ds_read_b64_tr_b16 %s, v3 offset:%d" % (vr(10 + 4 * nt, 2), nt * 32 + 512))
    a("s_waitcnt lgkmcnt(0)")
    for nt in range(8):
        a("buffer_store_dwordx4 %s, v7, s[20:23], s25 offen" % vr(8 + 4 * nt))
        a("s_add_u32 s25, s25, 0x%x" % (128 * 1024))
    a.lab("L_k0_end")
    a("s_endpgm")

SLOT = 34816
QPB = 29696
QP0 = SLOT
LDS1 = 160 * 1024
V_ACC = 0
V_Q = 64
V_S = 96
V_NM = 112
V_KV = 128
V_KA0, V_KA1, V_VA, V_DK, V_L, V_T0, V_T1, V_T2 = 160, 161, 162, 163, 164, 165, 166, 167
V_FS = [64, 104]
V_XA0, V_XA1, V_WA, V_DQ = 144, 145, 146, 147
S_BLK, S_B, S_HP, S_W, S_HSEL, S_QT = 3, 4, 5, 6, 7, 44
S_X, S_K, S_V, S_WQ, S_WS = 20, 24, 28, 32, 40
S_D1, S_D2 = 48, 52
S_G1, S_G1S, S_G1A, S_L1, S_L1S = 56, 57, 58, 59, 60
S_G2, S_G2S, S_L2 = 61, 62, 63
S_T0, S_T1, S_T2, S_T3 = 64, 65, 66, 67
S_ROLE = 68
S_SC = 69

def gen_k1(a):
    a.lab("attn_kernel")
    a("s_cmp_ge_u32 s2, 256")
    a("s_cbranch_scc1 L_k1_end")
    a("s_lshr_b32 s%d, s2, 7" % S_BLK)
    a("s_bfe_u32 s%d, s2, 0x30004" % S_B)
    a("s_and_b32 s%d, s2, 15" % S_HP)
    a("s_mul_i32 s%d, s%d, 40" % (S_T0, S_BLK))
    a("s_add_u32 s8, s0, s%d" % S_T0)
    a("s_addc_u32 s9, s1, 0")
    a("s_load_dwordx8 s[12:19], s[8:9], 0")
    a("s_load_dwordx2 s[10:11], s[0:1], 96")
    a("v_lshrrev_b32 v1, 6, v0")
    a("v_and_b32 v0, 63, v0")
    a("s_nop 0")
    a("v_readfirstlane_b32 s%d, v1" % S_W)
    a("s_nop 3")
    a("s_cmp_ge_u32 s%d, 6" % S_W)
    a("s_cselect_b32 s%d, 1, 0" % S_HSEL)
    a("s_mul_i32 s%d, s%d, 6" % (S_T0, S_HSEL))
    a("s_sub_u32 s%d, s%d, s%d" % (S_QT, S_W, S_T0))
    a("s_lshr_b32 s%d, s%d, 2" % (S_ROLE, S_W))
    a("s_mov_b32 s%d, 0x3e0293ee" % S_SC)
    a("s_waitcnt lgkmcnt(0)")
    srd(a, S_X, 12, SZ_X)
    srd(a, S_K, 14, SZ_KV)
    srd(a, S_V, 16, SZ_KV)
    srd(a, S_WQ, 18, SZ_W)
    srd(a, S_WS, 10, WS_BYTES)
    a("v_and_b32 v1, 31, v0")
    a("v_lshrrev_b32 v2, 5, v0")
    a("v_bfe_u32 v3, v0, 4, 1")
    a("v_bfe_u32 v4, v0, 2, 2")
    a("v_and_b32 v5, 3, v0")
    a("s_lshl_b32 s%d, s%d, 5" % (S_T0, S_QT))
    a("v_add_u32 v6, s%d, v1" % S_T0)
    a("v_bfe_u32 v7, v6, 2, 2")
    a("v_xor_b32 v8, v2, v7")
    a("v_lshlrev_b32 v6, 6, v6")
    a("v_lshl_add_u32 v%d, v8, 4, v6" % V_XA0)
    a("v_xor_b32 v8, 2, v8")
    a("v_lshl_add_u32 v%d, v8, 4, v6" % V_XA1)
    a("v_add_u32 v%d, %d, v%d" % (V_XA0, QP0, V_XA0))
    a("v_add_u32 v%d, %d, v%d" % (V_XA1, QP0, V_XA1))
    a("v_lshl_add_u32 v6, v2, 2, v4")
    a("v_mul_u32_u24 v6, 1088, v6")
    a("v_lshl_add_u32 v6, v3, 5, v6")
    a("v_and_b32 v7, 1, v5")
    a("v_lshl_add_u32 v6, v7, 4, v6")
    a("v_lshrrev_b32 v7, 1, v5")
    a("v_lshl_add_u32 v6, v7, 3, v6")
    a("s_lshl_b32 s%d, s%d, 8" % (S_T0, S_HSEL))
    a("s_add_u32 s%d, s%d, %d" % (S_T0, S_T0, QP0 + 12288))
    a("v_add_u32 v%d, s%d, v6" % (V_WA, S_T0))
    a("v_lshrrev_b32 v6, 2, v1")
    a("v_mul_u32_u24 v6, 1088, v6")
    a("v_and_b32 v7, 3, v1")
    a("v_lshl_add_u32 v6, v7, 8, v6")
    a("v_xor_b32 v8, v2, v7")
    a("s_mul_i32 s%d, s%d, 8704" % (S_T0, S_HSEL))
    a("v_add_u32 v6, s%d, v6" % S_T0)
    a("v_lshl_add_u32 v%d, v8, 4, v6" % V_KA0)
    a("v_xor_b32 v8, 2, v8")
    a("v_lshl_add_u32 v%d, v8, 4, v6" % V_KA1)
    a("v_mul_u32_u24 v6, 1088, v4")
    a("v_lshl_add_u32 v6, v2, 8, v6")
    a("v_lshl_add_u32 v6, v3, 5, v6")
    a("v_lshl_add_u32 v6, v5, 3, v6")
    a("s_add_u32 s%d, s%d, 17408" % (S_T0, S_T0))
    a("v_add_u32 v%d, s%d, v6" % (V_VA, S_T0))
    a("s_cmp_eq_u32 s%d, 0" % S_ROLE)
    for i in range(3):
        a("s_cselect_b32 s%d, s%d, s%d" % (S_D1 + i, S_X + i, S_WQ + i))
    a("s_mov_b32 s%d, 0x00020000" % (S_D1 + 3))
    a("s_mov_b32 s%d, 8192" % S_T0)
    a("s_cselect_b32 s%d, 20480, s%d" % (S_G1S, S_T0))
    a("s_cselect_b32 s%d, 64, 262144" % S_G1A)
    a("s_mov_b32 s%d, 1088" % S_T0)
    a("s_cselect_b32 s%d, 1024, s%d" % (S_L1S, S_T0))
    a("s_mul_i32 s%d, s%d, 192" % (S_T0, S_B))
    a("s_mul_i32 s%d, s%d, 48" % (S_T1, S_W))
    a("s_add_u32 s%d, s%d, s%d" % (S_T0, S_T0, S_T1))
    a("s_mul_i32 s%d, s%d, 1280" % (S_T0, S_T0))
    a("s_mul_i32 s%d, s%d, 3072" % (S_T1, S_W))
    a("s_add_u32 s%d, s%d, %d" % (S_T1, S_T1, QP0))
    a("s_sub_u32 s%d, s%d, 4" % (S_T2, S_W))
    a("s_lshl_b32 s%d, s%d, 16" % (S_T3, S_T2))
    a("s_lshl_b32 s70, s%d, 9" % S_HP)
    a("s_add_u32 s%d, s%d, s70" % (S_T3, S_T3))
    a("s_mul_i32 s%d, s%d, 4352" % (S_T2, S_T2))
    a("s_add_u32 s%d, s%d, %d" % (S_T2, S_T2, QP0 + 12288))
    a("s_cmp_eq_u32 s%d, 0" % S_ROLE)
    a("s_cselect_b32 s%d, s%d, s%d" % (S_G1, S_T0, S_T3))
    a("s_cselect_b32 s%d, s%d, s%d" % (S_L1, S_T1, S_T2))
    a("v_lshrrev_b32 v6, 2, v0")
    a("v_bfe_u32 v7, v0, 4, 2")
    a("v_xor_b32 v7, v5, v7")
    a("v_mul_u32_u24 v6, 1280, v6")
    a("v_lshl_add_u32 v6, v7, 4, v6")
    a("v_lshlrev_b32 v7, 15, v2")
    a("v_lshl_add_u32 v7, v1, 4, v7")
    a("s_cselect_b64 vcc, -1, 0")
    a("v_cndmask_b32 v%d, v7, v6, vcc" % V_DQ)
    a("s_sub_u32 s%d, s%d, 8" % (S_T0, S_W))
    a("s_and_b32 s%d, s%d, 1" % (S_T1, S_T0))
    a("s_lshl_b32 s%d, s%d, 5" % (S_T2, S_B))
    a("s_lshl_b32 s%d, s%d, 1" % (S_T3, S_HP))
    a("s_add_u32 s%d, s%d, s%d" % (S_T2, S_T2, S_T3))
    a("s_add_u32 s%d, s%d, s%d" % (S_T2, S_T2, S_T1))
    a("s_lshl_b32 s%d, s%d, 17" % (S_G2, S_T2))
    a("s_mul_i32 s%d, s%d, 8704" % (S_L2, S_T0))
    a("s_cmp_lt_u32 s%d, 10" % S_W)
    for i in range(3):
        a("s_cselect_b32 s%d, s%d, s%d" % (S_D2 + i, S_K + i, S_V + i))
    a("s_mov_b32 s%d, 0x00020000" % (S_D2 + 3))
    a("v_lshrrev_b32 v6, 4, v0")
    a("v_and_b32 v7, 15, v0")
    a("v_xor_b32 v8, v7, v6")
    a("v_lshlrev_b32 v8, 4, v8")
    a("v_lshl_add_u32 v8, v6, 8, v8")
    a("v_lshlrev_b32 v7, 4, v7")
    a("v_lshl_add_u32 v7, v6, 10, v7")
    a("s_cselect_b64 vcc, -1, 0")
    a("v_cndmask_b32 v%d, v7, v8, vcc" % V_DK)
    a("v_mov_b32 v%d, v0" % V_T2)

    def qp_dma(stage):
        buf = stage % 4
        lab = "L_qd_%d" % stage
        a("s_cmp_ge_u32 s%d, 2" % S_ROLE)
        a("s_cbranch_scc1 %s_e" % lab)
        a("s_mov_b32 s%d, s%d" % (S_T0, S_G1))
        a("s_add_u32 s%d, s%d, %d" % (S_T1, S_L1, buf * QPB))
        for k in range(4):
            if k == 3:
                a("s_cmp_eq_u32 s%d, 0" % S_ROLE)
                a("s_cbranch_scc1 %s_x" % lab)
            a("s_mov_b32 m0, s%d" % S_T1)
            a("s_nop 0")
            a("buffer_load_dwordx4 v%d, %s, s%d offen lds" % (V_DQ, sr(S_D1), S_T0))
            if k < 3:
                a("s_add_u32 s%d, s%d, s%d" % (S_T0, S_T0, S_G1S))
                a("s_add_u32 s%d, s%d, s%d" % (S_T1, S_T1, S_L1S))
        a.lab(lab + "_x")
        a("s_add_u32 s%d, s%d, s%d" % (S_G1, S_G1, S_G1A))
        a.lab(lab + "_e")

    def kv_dma(stage, tag):
        slot = stage % 4
        lab = "L_kd_%s" % tag
        a("s_cmp_lt_u32 s%d, 2" % S_ROLE)
        a("s_cbranch_scc1 %s_e" % lab)
        a("s_cmp_lt_u32 s%d, 10" % S_W)
        a("s_cbranch_scc0 %s_v" % lab)
        for P in range(8):
            a("s_add_u32 s%d, s%d, %d" % (S_T0, S_G2, stage * 8192 + P * 1024))
            a("s_add_u32 m0, s%d, %d" % (S_L2, slot * SLOT + P * 1088))
            a("s_nop 0")
            a("buffer_load_dwordx4 v%d, %s, s%d offen lds" % (V_DK, sr(S_D2), S_T0))
        a("s_branch %s_e" % lab)
        a.lab(lab + "_v")
        for P in range(8):
            a("s_add_u32 s%d, s%d, %d" % (S_T0, S_G2, stage * 8192 + (16 * (P // 4) + P % 4) * 256))
            a("s_add_u32 m0, s%d, %d" % (S_L2, slot * SLOT + P * 1088))
            a("s_nop 0")
            a("buffer_load_dwordx4 v%d, %s, s%d offen lds" % (V_DK, sr(S_D2), S_T0))
        a.lab(lab + "_e")

    def role_wait(tag, n0, n1, n2):
        lab = "L_rw_%s" % tag
        vals = [n0, n1, n2]
        if all(v is None for v in vals):
            return
        for r in range(3):
            if vals[r] is None:
                continue
            a("s_cmp_lg_u32 s%d, %d" % (S_ROLE, r))
            a("s_cbranch_scc1 %s_%d" % (lab, r))
            a("s_waitcnt vmcnt(%d)" % vals[r])
            a.lab("%s_%d" % (lab, r))

    def qp_reads(stage, fs):
        buf = stage % 4
        base = V_FS[fs]
        L = []
        for ks in range(2):
            L.append("ds_read_b128 %s, v%d" % (vr(base + 4 * ks), V_XA0 + ks))
            for t in range(4):
                d = base + 8 + (ks * 4 + t) * 4
                for u in range(2):
                    L.append("ds_read_b64_tr_b16 %s, v%d offset:%d" % (vr(d + 2 * u, 2), V_WA, ks * 8704 + u * 512 + t * 64))
        return L

    def qp_addr_adv(stage_from):
        d = QPB if (stage_from % 4) != 3 else -3 * QPB
        for r in (V_XA0, V_XA1, V_WA):
            if d > 0:
                a("v_add_u32 v%d, %d, v%d" % (r, d, r))
            else:
                a("v_subrev_u32 v%d, %d, v%d" % (r, -d, r))

    for st in range(4):
        qp_dma(st)
    kv_dma(0, "p0")
    for i in range(64):
        a("v_mov_b32 v%d, 0" % (V_ACC + i))
    role_wait("pre", 9, 12, None)
    a("s_barrier")
    for ins in qp_reads(0, 0):
        a(ins)
    qp_addr_adv(0)
    NQ = 20
    for j in range(NQ):
        a.c("---- qproj iter %d" % j)
        rem = min(NQ - 1, j + 3) - (j + 1)
        if j + 1 <= NQ - 1:
            role_wait("q%d" % j, 3 * rem, 4 * rem, None)
        a("s_waitcnt lgkmcnt(0)")
        a("s_barrier")
        if j + 4 < NQ:
            qp_dma(j + 4)
        if j >= 17:
            kv_dma(j - 16, "q%d" % j)
        fs = j & 1
        base = V_FS[fs]
        rd = qp_reads(j + 1, fs ^ 1) if j + 1 < NQ else []
        mf = []
        for ks in range(2):
            for t in range(4):
                mf.append("v_mfma_f32_32x32x16_bf16 %s, %s, %s, %s" % (
                    vr(V_ACC + 16 * t, 16), vr(base + 8 + (ks * 4 + t) * 4), vr(base + 4 * ks), vr(V_ACC + 16 * t, 16)))
        ri = 0
        for m in range(8):
            a(mf[m])
            n = 3 if m < 2 else 2
            for _ in range(n):
                if ri < len(rd):
                    a(rd[ri]); ri += 1
        while ri < len(rd):
            a(rd[ri]); ri += 1
        if j + 1 < NQ:
            qp_addr_adv(j + 1)
    a.c("---- q convert")
    a("s_nop 15")
    a("s_nop 3")
    for t in range(4):
        for p in range(8):
            i0 = V_ACC + 16 * t + 2 * p
            a("v_mul_f32 v%d, s%d, v%d" % (i0, S_SC, i0))
            a("v_mul_f32 v%d, s%d, v%d" % (i0 + 1, S_SC, i0 + 1))
            a("v_cvt_pk_bf16_f32 v%d, v%d, v%d" % (V_Q + t * 8 + p, i0, i0 + 1))
    for i in range(64):
        a("v_mov_b32 v%d, 0" % (V_ACC + i))
    a("v_mov_b32 v%d, 0" % V_L)

    def k_reads(stage):
        L = []
        for s in range(8):
            L.append("ds_read_b128 %s, v%d offset:%d" % (vr(V_KV + 4 * s), V_KA0 + (s & 1), (s >> 1) * 64))
        return L
    def v_reads():
        L = []
        for sl in range(2):
            for dt in range(4):
                f = sl * 4 + dt
                for u in range(2):
                    L.append("ds_read_b64_tr_b16 %s, v%d offset:%d" % (vr(V_KV + 4 * f + 2 * u, 2), V_VA, sl * 4352 + u * 512 + dt * 64))
        return L
    def slot_adv(regs, stage_from):
        d = SLOT if (stage_from % 4) != 3 else -3 * SLOT
        for r in regs:
            if d > 0:
                a("v_add_u32 v%d, %d, v%d" % (r, d, r))
            else:
                a("v_subrev_u32 v%d, %d, v%d" % (r, -d, r))

    role_wait("a_pre", None, None, 24)
    a("s_barrier")
    for ins in k_reads(0):
        a(ins)
    slot_adv((V_KA0, V_KA1), 0)
    NT = 16
    rare = []
    for t in range(NT):
        a.c("---- attn stage %d" % t)
        if t + 1 < NT:
            last_issued = 3 if t == 0 else min(t + 2, NT - 1)
            role_wait("a%d" % t, None, None, 8 * (last_issued - (t + 1)))
        a("s_waitcnt lgkmcnt(0)")
        a("s_barrier")
        if t >= 1 and t + 3 < NT:
            kv_dma(t + 3, "a%d" % t)
        vrd = v_reads()
        S = V_S
        for s in range(8):
            c = ("0" if t == 0 else vr(V_NM, 16)) if s == 0 else vr(S, 16)
            a("v_mfma_f32_32x32x16_bf16 %s, %s, %s, %s" % (vr(S, 16), vr(V_KV + 4 * s), vr(V_Q + 4 * s), c))
            if s >= 1:
                a(vrd[2 * (s - 1)]); a(vrd[2 * (s - 1) + 1])
        a(vrd[14]); a(vrd[15])
        slot_adv((V_VA,), t)
        a("s_nop 7")
        a("s_nop 1")
        T0, T1 = V_T0, V_T1
        a("v_max3_f32 v%d, v%d, v%d, v%d" % (T0, S, S + 1, S + 2))
        a("v_max3_f32 v%d, v%d, v%d, v%d" % (T1, S + 3, S + 4, S + 5))
        a("v_max3_f32 v%d, v%d, v%d, v%d" % (T0, T0, S + 6, S + 7))
        a("v_max3_f32 v%d, v%d, v%d, v%d" % (T1, T1, S + 8, S + 9))
        a("v_max3_f32 v%d, v%d, v%d, v%d" % (T0, T0, S + 10, S + 11))
        a("v_max3_f32 v%d, v%d, v%d, v%d" % (T1, T1, S + 12, S + 13))
        a("v_max3_f32 v%d, v%d, v%d, v%d" % (T0, T0, S + 14, S + 15))
        a("v_max_f32 v%d, v%d, v%d" % (T0, T0, T1))
        if t == 0:
            a("v_mov_b32 v%d, v%d" % (T1, T0))
            a("s_nop 1")
            a("v_permlane32_swap_b32 v%d, v%d" % (T0, T1))
            a("s_nop 1")
            a("v_max_f32 v%d, v%d, v%d" % (T0, T0, T1))
            for i in range(16):
                a("v_sub_f32 v%d, v%d, v%d" % (S + i, S + i, T0))
            for i in range(16):
                a("v_sub_f32 v%d, 0, v%d" % (V_NM + i, T0))
        else:
            a("v_cmp_lt_f32 vcc, 0x41000000, v%d" % T0)
            a("s_cbranch_vccnz L_rare_%d" % t)
            a.lab("L_back_%d" % t)
            R = []
            R.append("L_rare_%d:" % t)
            R.append("    v_mov_b32 v%d, v%d" % (T1, T0))
            R.append("    s_nop 1")
            R.append("    v_permlane32_swap_b32 v%d, v%d" % (T0, T1))
            R.append("    s_nop 1")
            R.append("    v_max_f32 v%d, v%d, v%d" % (T0, T0, T1))
            R.append("    v_max_f32 v%d, 0, v%d" % (T0, T0))
            R.append("    v_exp_f32 v%d, -v%d" % (T1, T0))
            for i in range(16):
                R.append("    v_sub_f32 v%d, v%d, v%d" % (S + i, S + i, T0))
            for i in range(16):
                R.append("    v_sub_f32 v%d, v%d, v%d" % (V_NM + i, V_NM + i, T0))
            for i in range(64):
                R.append("    v_mul_f32 v%d, v%d, v%d" % (V_ACC + i, V_ACC + i, T1))
            R.append("    v_mul_f32 v%d, v%d, v%d" % (V_L, V_L, T1))
            R.append("    s_nop 1")
            R.append("    s_branch L_back_%d" % t)
            rare += R
        for i in range(16):
            a("v_exp_f32 v%d, v%d" % (S + i, S + i))
        for i in range(16):
            a("v_add_f32 v%d, v%d, v%d" % (V_L, V_L, S + i))
        for p in range(4):
            a("v_cvt_pk_bf16_f32 v%d, v%d, v%d" % (S + p, S + 2 * p, S + 2 * p + 1))
        for p in range(4):
            a("v_cvt_pk_bf16_f32 v%d, v%d, v%d" % (S + 8 + p, S + 8 + 2 * p, S + 8 + 2 * p + 1))
        a("s_waitcnt lgkmcnt(0)")
        krd = k_reads(t + 1) if t + 1 < NT else []
        for f in range(8):
            sl, dt = f // 4, f % 4
            a("v_mfma_f32_32x32x16_bf16 %s, %s, %s, %s" % (vr(V_ACC + 16 * dt, 16), vr(V_KV + 4 * f), vr(S + 8 * sl), vr(V_ACC + 16 * dt, 16)))
            if f >= 1 and krd:
                a(krd[f - 1])
        if krd:
            a(krd[7])
            slot_adv((V_KA0, V_KA1), t + 1)
    a.c("---- epilogue")
    T0, T1 = V_T0, V_T1
    a("v_mov_b32 v%d, v%d" % (T1, V_L))
    a("s_nop 1")
    a("v_permlane32_swap_b32 v%d, v%d" % (V_L, T1))
    a("s_nop 1")
    a("v_add_f32 v%d, v%d, v%d" % (V_L, V_L, T1))
    a("v_rcp_f32 v%d, v%d" % (V_L, V_L))
    a("s_mul_i32 s%d, s%d, 96" % (S_T0, S_BLK))
    a("s_mul_i32 s%d, s%d, 12" % (S_T1, S_B))
    a("s_add_u32 s%d, s%d, s%d" % (S_T0, S_T0, S_T1))
    a("s_lshl_b32 s%d, s%d, 1" % (S_T1, S_QT))
    a("s_add_u32 s%d, s%d, s%d" % (S_T0, S_T0, S_T1))
    a("s_lshl_b32 s%d, s%d, 7" % (S_T0, S_T0))
    a("s_lshl_b32 s%d, s%d, 1" % (S_T1, S_HP))
    a("s_add_u32 s%d, s%d, s%d" % (S_T1, S_T1, S_HSEL))
    a("s_lshl_b32 s%d, s%d, 2" % (S_T1, S_T1))
    a("s_add_u32 s%d, s%d, s%d" % (S_T0, S_T0, S_T1))
    a("s_lshl_b32 s%d, s%d, 10" % (S_T0, S_T0))
    ln = V_T2
    a("v_and_b32 v%d, 15, v%d" % (T0, ln))
    a("v_bfe_u32 v%d, v%d, 4, 1" % (T1, ln))
    a("v_lshlrev_b32 v%d, 17, v%d" % (T1, T1))
    a("v_lshl_add_u32 v%d, v%d, 4, v%d" % (T0, T0, T1))
    a("v_lshrrev_b32 v%d, 5, v%d" % (T1, ln))
    a("v_lshl_add_u32 v%d, v%d, 8, v%d" % (T0, T1, T0))
    a("s_nop 7")
    for i in range(64):
        a("v_mul_f32 v%d, v%d, v%d" % (V_ACC + i, V_ACC + i, V_L))
    for dt in range(4):
        for half in range(2):
            b0 = V_ACC + 16 * dt + 8 * half
            d = V_Q + (dt * 2 + half) * 4
            for p in range(4):
                a("v_cvt_pk_bf16_f32 v%d, v%d, v%d" % (d + p, b0 + 2 * p, b0 + 2 * p + 1))
            a("buffer_store_dwordx4 %s, v%d, %s, s%d offen offset:%d" % (vr(d), T0, sr(S_WS), S_T0, dt * 1024 + half * 512))
    a.lab("L_k1_end")
    a("s_endpgm")
    a.L += rare

def gen_k2(a):
    a.lab("oproj_kernel")
    a("s_cmp_ge_u32 s2, 256")
    a("s_cbranch_scc1 L_k2_end")
    a("s_load_dwordx2 s[8:9], s[0:1], 80")
    a("s_load_dwordx2 s[10:11], s[0:1], 96")
    a("s_lshr_b32 s3, s2, 7")
    a("s_bfe_u32 s4, s2, 0x40003")
    a("s_and_b32 s5, s2, 7")
    a("v_lshrrev_b32 v1, 6, v0")
    a("v_and_b32 v0, 63, v0")
    a("s_nop 0")
    a("v_readfirstlane_b32 s6, v1")
    a("s_waitcnt lgkmcnt(0)")
    srd(a, 12, 8, SZ_OUT)
    srd(a, 16, 10, WS_BYTES)
    a("v_lshlrev_b32 v1, 4, v0")
    a("s_mul_i32 s20, s3, 96")
    a("s_mul_i32 s21, s4, 6")
    a("s_add_u32 s20, s20, s21")
    a("s_lshl_b32 s20, s20, 7")
    a("s_lshl_b32 s21, s6, 5")
    a("s_add_u32 s20, s20, s21")
    a("s_lshl_b32 s20, s20, 10")
    a("s_mul_i32 s22, s3, 40")
    a("s_mul_i32 s23, s5, 5")
    a("s_add_u32 s22, s22, s23")
    a("s_lshl_b32 s22, s22, 7")
    a("s_add_u32 s22, s22, s21")
    a("s_lshl_b32 s22, s22, 10")
    a("s_add_u32 s22, s22, 0x%x" % WS_WF)
    for i in range(6):
        a("s_add_u32 s%d, s20, %d" % (24 + i, i * 131072))
    for j in range(5):
        a("s_add_u32 s%d, s22, %d" % (30 + j, j * 131072))
    ACC = 0
    FB = 8
    NB = 5
    def ar(b, n=4):
        return "a[%d:%d]" % (b, b + n - 1)
    for i in range(120):
        a("v_accvgpr_write_b32 a%d, 0" % (ACC + i))
    NK = 32
    def loads(ks):
        b = FB + 44 * (ks % NB)
        L = []
        for f in range(11):
            L.append("buffer_load_dwordx4 %s, v1, s[16:19], s%d offen offset:%d" % (vr(b + 4 * f), 24 + f, (ks % 4) * 1024))
        if ks % 4 == 3:
            for f in range(11):
                L.append("s_add_u32 s%d, s%d, 4096" % (24 + f, 24 + f))
        return L
    for ks in range(NB - 1):
        for ins in loads(ks):
            a(ins)
    for ks in range(NK):
        nxt = ks + NB - 1
        ld = loads(nxt) if nxt < NK else []
        outstanding_after = min(NK - 1, ks + NB - 2) - ks
        a("s_waitcnt vmcnt(%d)" % (11 * outstanding_after))
        b = FB + 44 * (ks % NB)
        li = 0
        m = 0
        for j in range(5):
            for i in range(6):
                a("v_mfma_f32_16x16x32_bf16 %s, %s, %s, %s" % (ar(ACC + 4 * (j * 6 + i)), vr(b + 24 + 4 * j), vr(b + 4 * i), ar(ACC + 4 * (j * 6 + i))))
                m += 1
                if li < len(ld) and m >= 2:
                    a(ld[li]); li += 1
        while li < len(ld):
            a(ld[li]); li += 1
    a("s_nop 15")
    a("s_mul_i32 s36, s6, 30720")
    a("v_add_u32 v2, s36, v1")
    for tl in range(30):
        a("ds_write_b128 v2, %s offset:%d" % (ar(ACC + 4 * tl), tl * 1024))
    a("s_lshl_b32 s36, s6, 10")
    a("v_add_u32 v2, s36, v1")
    a("v_add_u32 v5, 61440, v2")
    a("v_and_b32 v3, 15, v0")
    a("v_mul_u32_u24 v3, 2560, v3")
    a("v_lshrrev_b32 v4, 4, v0")
    a("v_lshl_add_u32 v3, v4, 3, v3")
    a("s_mul_i32 s37, s4, %d" % (96 * 2560))
    a("s_mul_i32 s38, s3, 1280")
    a("s_add_u32 s37, s37, s38")
    a("s_mul_i32 s38, s5, 160")
    a("s_add_u32 s37, s37, s38")
    a("s_waitcnt lgkmcnt(0)")
    a("s_barrier")
    for n in range(8):
        if n == 7:
            a("s_cmp_ge_u32 s6, 2")
            a("s_cbranch_scc1 L_k2_end")
        for src_ in range(4):
            a("ds_read_b128 %s, v%d offset:%d" % (vr(FB + 16 * (n % 2) + 4 * src_), 2 if src_ < 2 else 5, (src_ % 2) * 30720 + n * 4096))
        a("s_add_u32 s39, s6, %d" % (4 * n))
        a("s_mul_i32 s40, s39, 43")
        a("s_lshr_b32 s40, s40, 8")
        a("s_mul_i32 s41, s40, 6")
        a("s_sub_u32 s41, s39, s41")
        a("s_mul_i32 s41, s41, %d" % (16 * 2560))
        a("s_lshl_b32 s40, s40, 5")
        a("s_add_u32 s41, s41, s40")
        a("s_add_u32 s41, s41, s37")
        a("s_waitcnt lgkmcnt(0)")
        b = FB + 16 * (n % 2)
        for r in range(4):
            a("v_add_f32 v%d, v%d, v%d" % (b + r, b + r, b + 4 + r))
            a("v_add_f32 v%d, v%d, v%d" % (b + 8 + r, b + 8 + r, b + 12 + r))
        for r in range(4):
            a("v_add_f32 v%d, v%d, v%d" % (b + r, b + r, b + 8 + r))
        a("v_cvt_pk_bf16_f32 v%d, v%d, v%d" % (b + 4, b, b + 1))
        a("v_cvt_pk_bf16_f32 v%d, v%d, v%d" % (b + 5, b + 2, b + 3))
        a("buffer_store_dwordx2 %s, v3, s[12:15], s41 offen" % vr(b + 4, 2))
    a.lab("L_k2_end")
    a("s_endpgm")

def kd(a, name, vgpr, sgpr=102, acc=None):
    a.L.append(".p2align 6")
    a.L.append(".amdhsa_kernel %s" % name)
    a.L.append("  .amdhsa_next_free_vgpr %d" % vgpr)
    a.L.append("  .amdhsa_next_free_sgpr %d" % sgpr)
    a.L.append("  .amdhsa_accum_offset %d" % (acc if acc else (vgpr + 3) // 4 * 4))
    a.L.append("  .amdhsa_group_segment_fixed_size 0")
    a.L.append("  .amdhsa_kernarg_size 104")
    a.L.append("  .amdhsa_user_sgpr_count 2")
    a.L.append("  .amdhsa_user_sgpr_kernarg_segment_ptr 1")
    a.L.append("  .amdhsa_system_sgpr_workgroup_id_x 1")
    a.L.append(".end_amdhsa_kernel")

def main():
    hdr = open("cdna_kernels/%s.s.ref" % NAME).read().split("; Override launch geometry")[0]
    a = A()
    a.L.append(hdr.rstrip("\n"))
    a.L.append("; @launch kernel=wprep_kernel grid=(256,1,1) block=(320,1,1) lds=43520")
    a.L.append("; @launch kernel=attn_kernel grid=(256,1,1) block=(768,1,1) lds=%d" % LDS1)
    a.L.append("; @launch kernel=oproj_kernel grid=(256,1,1) block=(256,1,1) lds=122880")
    a.L.append('.amdgcn_target "amdgcn-amd-amdhsa--gfx950"')
    a.L.append(".text")
    for nm, g in (("wprep_kernel", gen_k0), ("attn_kernel", gen_k1), ("oproj_kernel", gen_k2)):
        a.L.append(".globl %s" % nm)
        a.L.append(".p2align 8")
        a.L.append(".type %s,@function" % nm)
        g(a)
    a.L.append('.section .rodata,"a"')
    kd(a, "wprep_kernel", 48)
    kd(a, "attn_kernel", 168)
    kd(a, "oproj_kernel", 228 + 120, acc=228)
    out = sys.argv[1] if len(sys.argv) > 1 else "cdna_kernels/%s.s" % NAME
    open(out, "w").write(a.text())

main()
```

```python
import sys

NAME = "concat_heads__gqa_block_cached__mha_block_cached__near_ridge"

class A:
    def __init__(self):
        self.L = []
    def __call__(self, s):
        self.L.append("    " + s)
    def lab(self, s):
        self.L.append(s + ":")
    def c(self, s):
        self.L.append("    ; " + s)
    def text(self):
        return "\n".join(self.L) + "\n"

def vr(b, n=4):
    return "v[%d:%d]" % (b, b + n - 1)
def sr(b, n=4):
    return "s[%d:%d]" % (b, b + n - 1)

WS_OF = 0
OF_BYTES = 2 * 96 * 128 * 1024
WS_WF = OF_BYTES
WF_BYTES = 2 * 40 * 128 * 1024
WS_BYTES = 268435456

SZ_X = 8 * 192 * 640 * 2
SZ_KV = 8 * 32 * 512 * 128 * 2
SZ_W = 640 * 4096 * 2
SZ_OUT = 8 * 192 * 1280 * 2

def srd(a, d, base, size):
    a("s_mov_b32 s%d, s%d" % (d, base))
    a("s_and_b32 s%d, s%d, 0xffff" % (d + 1, base + 1))
    a("s_mov_b32 s%d, 0x%x" % (d + 2, size))
    a("s_mov_b32 s%d, 0x00020000" % (d + 3))

def gen_k0(a):
    a.lab("wprep_kernel")
    a("s_cmp_ge_u32 s2, 256")
    a("s_cbranch_scc1 L_k0_end")
    a("s_lshr_b32 s3, s2, 7")
    a("s_and_b32 s4, s2, 127")
    a("s_mul_i32 s5, s3, 40")
    a("s_add_u32 s6, s0, s5")
    a("s_addc_u32 s7, s1, 0")
    a("s_load_dwordx2 s[8:9], s[6:7], 32")
    a("s_load_dwordx2 s[10:11], s[0:1], 96")
    a("v_lshrrev_b32 v1, 6, v0")
    a("v_and_b32 v0, 63, v0")
    a("s_nop 0")
    a("v_readfirstlane_b32 s12, v1")
    a("s_waitcnt lgkmcnt(0)")
    srd(a, 16, 8, SZ_W)
    srd(a, 20, 10, WS_BYTES)
    a("v_lshrrev_b32 v1, 4, v0")
    a("v_and_b32 v2, 15, v0")
    a("v_mul_u32_u24 v1, 5120, v1")
    a("v_lshl_add_u32 v1, v2, 4, v1")
    a("s_mul_i32 s13, s4, 40960")
    a("s_lshl_b32 s14, s12, 8")
    a("s_add_u32 s13, s13, s14")
    a("s_mul_i32 s15, s12, 8704")
    for P in range(8):
        a("s_add_u32 s24, s13, %d" % ((16 * (P // 4) + P % 4) * 1280))
        a("s_add_u32 m0, s15, %d" % (P * 1088))
        a("s_nop 0")
        a("buffer_load_dwordx4 v1, s[16:19], s24 offen lds")
    a("v_lshrrev_b32 v3, 5, v0")
    a("v_bfe_u32 v4, v0, 4, 1")
    a("v_bfe_u32 v5, v0, 2, 2")
    a("v_and_b32 v6, 3, v0")
    a("v_lshl_add_u32 v3, v3, 2, v5")
    a("v_mul_u32_u24 v3, 1088, v3")
    a("v_lshl_add_u32 v3, v4, 8, v3")
    a("v_lshl_add_u32 v3, v6, 3, v3")
    a("v_add_u32 v3, s15, v3")
    a("s_mul_i32 s25, s3, 40")
    a("s_lshl_b32 s26, s12, 3")
    a("s_add_u32 s25, s25, s26")
    a("s_lshl_b32 s25, s25, 7")
    a("s_add_u32 s25, s25, s4")
    a("s_lshl_b32 s25, s25, 10")
    a("s_add_u32 s25, s25, 0x%x" % WS_WF)
    a("v_lshlrev_b32 v7, 4, v0")
    a("s_waitcnt vmcnt(0)")
    for nt in range(8):
        a("ds_read_b64_tr_b16 %s, v3 offset:%d" % (vr(8 + 4 * nt, 2), nt * 32))
        a("ds_read_b64_tr_b16 %s, v3 offset:%d" % (vr(10 + 4 * nt, 2), nt * 32 + 512))
    a("s_waitcnt lgkmcnt(0)")
    for nt in range(8):
        a("buffer_store_dwordx4 %s, v7, s[20:23], s25 offen" % vr(8 + 4 * nt))
        a("s_add_u32 s25, s25, 0x%x" % (128 * 1024))
    a.lab("L_k0_end")
    a("s_endpgm")

SLOT = 34816
QPB = 29696
QP0 = SLOT
LDS1 = 160 * 1024
V_ACC = 0
V_Q = 64
V_S = 96
V_NM = 112
V_KV = 128
V_KA0, V_KA1, V_VA, V_DK, V_L, V_T0, V_T1, V_T2 = 160, 161, 162, 163, 164, 165, 166, 167
V_FS = [64, 104]
V_XA0, V_XA1, V_WA, V_DQ = 144, 145, 146, 147
S_BLK, S_B, S_HP, S_W, S_HSEL, S_QT = 3, 4, 5, 6, 7, 44
S_X, S_K, S_V, S_WQ, S_WS = 20, 24, 28, 32, 40
S_D1, S_D2 = 48, 52
S_G1, S_G1S, S_G1A, S_L1, S_L1S = 56, 57, 58, 59, 60
S_G2, S_G2S, S_L2 = 61, 62, 63
S_T0, S_T1, S_T2, S_T3 = 64, 65, 66, 67
S_ROLE = 68
S_SC = 69

STAMPS = "--stamps" in sys.argv
_stamp_n = [0]
def stamp(a):
    if not STAMPS:
        return
    n = _stamp_n[0]; _stamp_n[0] += 1
    a("s_memtime s[%d:%d]" % (72 + 2 * n, 73 + 2 * n))

def stamp_dump(a):
    if not STAMPS:
        return
    n = _stamp_n[0]
    a("s_waitcnt lgkmcnt(0)")
    a("s_cmp_lg_u32 s2, 0")
    a("s_cbranch_scc1 L_sd_e")
    a("s_and_b32 s64, s%d, 3" % S_W)
    a("s_cmp_lg_u32 s64, 0")
    a("s_cbranch_scc1 L_sd_e")
    a("s_load_dwordx2 s[10:11], s[0:1], 88")
    a("s_waitcnt lgkmcnt(0)")
    srd(a, 12, 10, 256)
    a("s_lshl_b32 s64, s%d, 4" % S_W)
    a("v_mov_b32 v1, 0")
    for i in range(n):
        a("s_sub_u32 s65, s%d, s72" % (72 + 2 * i))
        a("v_mov_b32 v2, s65")
        a("buffer_store_dword v2, v1, s[12:15], s64 offen offset:%d" % (4 * i))
    a.lab("L_sd_e")

def gen_k1(a):
    a.lab("attn_kernel")
    a("s_cmp_ge_u32 s2, 256")
    a("s_cbranch_scc1 L_k1_end")
    stamp(a)
    a("s_lshr_b32 s%d, s2, 7" % S_BLK)
    a("s_bfe_u32 s%d, s2, 0x30004" % S_B)
    a("s_and_b32 s%d, s2, 15" % S_HP)
    a("s_mul_i32 s%d, s%d, 40" % (S_T0, S_BLK))
    a("s_add_u32 s8, s0, s%d" % S_T0)
    a("s_addc_u32 s9, s1, 0")
    a("s_load_dwordx8 s[12:19], s[8:9], 0")
    a("s_load_dwordx2 s[10:11], s[0:1], 96")
    a("v_lshrrev_b32 v1, 6, v0")
    a("v_and_b32 v0, 63, v0")
    a("s_nop 0")
    a("v_readfirstlane_b32 s%d, v1" % S_W)
    a("s_nop 3")
    a("s_cmp_ge_u32 s%d, 6" % S_W)
    a("s_cselect_b32 s%d, 1, 0" % S_HSEL)
    a("s_mul_i32 s%d, s%d, 6" % (S_T0, S_HSEL))
    a("s_sub_u32 s%d, s%d, s%d" % (S_QT, S_W, S_T0))
    a("s_lshr_b32 s%d, s%d, 2" % (S_ROLE, S_W))
    a("s_mov_b32 s%d, 0x3e0293ee" % S_SC)
    a("s_waitcnt lgkmcnt(0)")
    srd(a, S_X, 12, SZ_X)
    srd(a, S_K, 14, SZ_KV)
    srd(a, S_V, 16, SZ_KV)
    srd(a, S_WQ, 18, SZ_W)
    srd(a, S_WS, 10, WS_BYTES)
    a("v_and_b32 v1, 31, v0")
    a("v_lshrrev_b32 v2, 5, v0")
    a("v_bfe_u32 v3, v0, 4, 1")
    a("v_bfe_u32 v4, v0, 2, 2")
    a("v_and_b32 v5, 3, v0")
    a("s_lshl_b32 s%d, s%d, 5" % (S_T0, S_QT))
    a("v_add_u32 v6, s%d, v1" % S_T0)
    a("v_bfe_u32 v7, v6, 2, 2")
    a("v_xor_b32 v8, v2, v7")
    a("v_lshlrev_b32 v6, 6, v6")
    a("v_lshl_add_u32 v%d, v8, 4, v6" % V_XA0)
    a("v_xor_b32 v8, 2, v8")
    a("v_lshl_add_u32 v%d, v8, 4, v6" % V_XA1)
    a("v_add_u32 v%d, %d, v%d" % (V_XA0, QP0, V_XA0))
    a("v_add_u32 v%d, %d, v%d" % (V_XA1, QP0, V_XA1))
    a("v_lshl_add_u32 v6, v2, 2, v4")
    a("v_mul_u32_u24 v6, 1088, v6")
    a("v_lshl_add_u32 v6, v3, 5, v6")
    a("v_and_b32 v7, 1, v5")
    a("v_lshl_add_u32 v6, v7, 4, v6")
    a("v_lshrrev_b32 v7, 1, v5")
    a("v_lshl_add_u32 v6, v7, 3, v6")
    a("s_lshl_b32 s%d, s%d, 8" % (S_T0, S_HSEL))
    a("s_add_u32 s%d, s%d, %d" % (S_T0, S_T0, QP0 + 12288))
    a("v_add_u32 v%d, s%d, v6" % (V_WA, S_T0))
    a("v_lshrrev_b32 v6, 2, v1")
    a("v_mul_u32_u24 v6, 1088, v6")
    a("v_and_b32 v7, 3, v1")
    a("v_lshl_add_u32 v6, v7, 8, v6")
    a("v_xor_b32 v8, v2, v7")
    a("s_mul_i32 s%d, s%d, 8704" % (S_T0, S_HSEL))
    a("v_add_u32 v6, s%d, v6" % S_T0)
    a("v_lshl_add_u32 v%d, v8, 4, v6" % V_KA0)
    a("v_xor_b32 v8, 2, v8")
    a("v_lshl_add_u32 v%d, v8, 4, v6" % V_KA1)
    a("v_mul_u32_u24 v6, 1088, v4")
    a("v_lshl_add_u32 v6, v2, 8, v6")
    a("v_lshl_add_u32 v6, v3, 5, v6")
    a("v_lshl_add_u32 v6, v5, 3, v6")
    a("s_add_u32 s%d, s%d, 17408" % (S_T0, S_T0))
    a("v_add_u32 v%d, s%d, v6" % (V_VA, S_T0))
    a("s_cmp_eq_u32 s%d, 0" % S_ROLE)
    for i in range(3):
        a("s_cselect_b32 s%d, s%d, s%d" % (S_D1 + i, S_X + i, S_WQ + i))
    a("s_mov_b32 s%d, 0x00020000" % (S_D1 + 3))
    a("s_mov_b32 s%d, 8192" % S_T0)
    a("s_cselect_b32 s%d, 20480, s%d" % (S_G1S, S_T0))
    a("s_cselect_b32 s%d, 64, 262144" % S_G1A)
    a("s_mov_b32 s%d, 1088" % S_T0)
    a("s_cselect_b32 s%d, 1024, s%d" % (S_L1S, S_T0))
    a("s_mul_i32 s%d, s%d, 192" % (S_T0, S_B))
    a("s_mul_i32 s%d, s%d, 48" % (S_T1, S_W))
    a("s_add_u32 s%d, s%d, s%d" % (S_T0, S_T0, S_T1))
    a("s_mul_i32 s%d, s%d, 1280" % (S_T0, S_T0))
    a("s_mul_i32 s%d, s%d, 3072" % (S_T1, S_W))
    a("s_add_u32 s%d, s%d, %d" % (S_T1, S_T1, QP0))
    a("s_sub_u32 s%d, s%d, 4" % (S_T2, S_W))
    a("s_lshl_b32 s%d, s%d, 16" % (S_T3, S_T2))
    a("s_lshl_b32 s70, s%d, 9" % S_HP)
    a("s_add_u32 s%d, s%d, s70" % (S_T3, S_T3))
    a("s_mul_i32 s%d, s%d, 4352" % (S_T2, S_T2))
    a("s_add_u32 s%d, s%d, %d" % (S_T2, S_T2, QP0 + 12288))
    a("s_cmp_eq_u32 s%d, 0" % S_ROLE)
    a("s_cselect_b32 s%d, s%d, s%d" % (S_G1, S_T0, S_T3))
    a("s_cselect_b32 s%d, s%d, s%d" % (S_L1, S_T1, S_T2))
    a("v_lshrrev_b32 v6, 2, v0")
    a("v_bfe_u32 v7, v0, 4, 2")
    a("v_xor_b32 v7, v5, v7")
    a("v_mul_u32_u24 v6, 1280, v6")
    a("v_lshl_add_u32 v6, v7, 4, v6")
    a("v_lshlrev_b32 v7, 15, v2")
    a("v_lshl_add_u32 v7, v1, 4, v7")
    a("s_cselect_b64 vcc, -1, 0")
    a("v_cndmask_b32 v%d, v7, v6, vcc" % V_DQ)
    a("s_sub_u32 s%d, s%d, 8" % (S_T0, S_W))
    a("s_and_b32 s%d, s%d, 1" % (S_T1, S_T0))
    a("s_lshl_b32 s%d, s%d, 5" % (S_T2, S_B))
    a("s_lshl_b32 s%d, s%d, 1" % (S_T3, S_HP))
    a("s_add_u32 s%d, s%d, s%d" % (S_T2, S_T2, S_T3))
    a("s_add_u32 s%d, s%d, s%d" % (S_T2, S_T2, S_T1))
    a("s_lshl_b32 s%d, s%d, 17" % (S_G2, S_T2))
    a("s_mul_i32 s%d, s%d, 8704" % (S_L2, S_T0))
    a("s_cmp_lt_u32 s%d, 10" % S_W)
    for i in range(3):
        a("s_cselect_b32 s%d, s%d, s%d" % (S_D2 + i, S_K + i, S_V + i))
    a("s_mov_b32 s%d, 0x00020000" % (S_D2 + 3))
    a("v_lshrrev_b32 v6, 4, v0")
    a("v_and_b32 v7, 15, v0")
    a("v_xor_b32 v8, v7, v6")
    a("v_lshlrev_b32 v8, 4, v8")
    a("v_lshl_add_u32 v8, v6, 8, v8")
    a("v_lshlrev_b32 v7, 4, v7")
    a("v_lshl_add_u32 v7, v6, 10, v7")
    a("s_cselect_b64 vcc, -1, 0")
    a("v_cndmask_b32 v%d, v7, v8, vcc" % V_DK)
    a("v_mov_b32 v%d, v0" % V_T2)

    def qp_dma(stage):
        buf = stage % 4
        lab = "L_qd_%d" % stage
        a("s_cmp_ge_u32 s%d, 2" % S_ROLE)
        a("s_cbranch_scc1 %s_e" % lab)
        a("s_mov_b32 s%d, s%d" % (S_T0, S_G1))
        a("s_add_u32 s%d, s%d, %d" % (S_T1, S_L1, buf * QPB))
        for k in range(4):
            if k == 3:
                a("s_cmp_eq_u32 s%d, 0" % S_ROLE)
                a("s_cbranch_scc1 %s_x" % lab)
            a("s_mov_b32 m0, s%d" % S_T1)
            a("s_nop 0")
            a("buffer_load_dwordx4 v%d, %s, s%d offen lds" % (V_DQ, sr(S_D1), S_T0))
            if k < 3:
                a("s_add_u32 s%d, s%d, s%d" % (S_T0, S_T0, S_G1S))
                a("s_add_u32 s%d, s%d, s%d" % (S_T1, S_T1, S_L1S))
        a.lab(lab + "_x")
        a("s_add_u32 s%d, s%d, s%d" % (S_G1, S_G1, S_G1A))
        a.lab(lab + "_e")

    def kv_dma(stage, tag):
        slot = stage % 4
        lab = "L_kd_%s" % tag
        a("s_cmp_lt_u32 s%d, 2" % S_ROLE)
        a("s_cbranch_scc1 %s_e" % lab)
        a("s_cmp_lt_u32 s%d, 10" % S_W)
        a("s_cbranch_scc0 %s_v" % lab)
        for P in range(8):
            a("s_add_u32 s%d, s%d, %d" % (S_T0, S_G2, stage * 8192 + P * 1024))
            a("s_add_u32 m0, s%d, %d" % (S_L2, slot * SLOT + P * 1088))
            a("s_nop 0")
            a("buffer_load_dwordx4 v%d, %s, s%d offen lds" % (V_DK, sr(S_D2), S_T0))
        a("s_branch %s_e" % lab)
        a.lab(lab + "_v")
        for P in range(8):
            a("s_add_u32 s%d, s%d, %d" % (S_T0, S_G2, stage * 8192 + (16 * (P // 4) + P % 4) * 256))
            a("s_add_u32 m0, s%d, %d" % (S_L2, slot * SLOT + P * 1088))
            a("s_nop 0")
            a("buffer_load_dwordx4 v%d, %s, s%d offen lds" % (V_DK, sr(S_D2), S_T0))
        a.lab(lab + "_e")

    def role_wait(tag, n0, n1, n2):
        lab = "L_rw_%s" % tag
        vals = [n0, n1, n2]
        if all(v is None for v in vals):
            return
        for r in range(3):
            if vals[r] is None:
                continue
            a("s_cmp_lg_u32 s%d, %d" % (S_ROLE, r))
            a("s_cbranch_scc1 %s_%d" % (lab, r))
            a("s_waitcnt vmcnt(%d)" % vals[r])
            a.lab("%s_%d" % (lab, r))

    def qp_reads(stage, fs):
        buf = stage % 4
        base = V_FS[fs]
        L = []
        for ks in range(2):
            L.append("ds_read_b128 %s, v%d" % (vr(base + 4 * ks), V_XA0 + ks))
            for t in range(4):
                d = base + 8 + (ks * 4 + t) * 4
                for u in range(2):
                    L.append("ds_read_b64_tr_b16 %s, v%d offset:%d" % (vr(d + 2 * u, 2), V_WA, ks * 8704 + u * 512 + t * 64))
        return L

    def qp_addr_adv(stage_from):
        d = QPB if (stage_from % 4) != 3 else -3 * QPB
        for r in (V_XA0, V_XA1, V_WA):
            if d > 0:
                a("v_add_u32 v%d, %d, v%d" % (r, d, r))
            else:
                a("v_subrev_u32 v%d, %d, v%d" % (r, -d, r))

    for st in range(4):
        qp_dma(st)
    kv_dma(0, "p0")
    for i in range(64):
        a("v_mov_b32 v%d, 0" % (V_ACC + i))
    role_wait("pre", 9, 12, None)
    a("s_barrier")
    stamp(a)
    for ins in qp_reads(0, 0):
        a(ins)
    qp_addr_adv(0)
    NQ = 20
    for j in range(NQ):
        a.c("---- qproj iter %d" % j)
        if j in (5, 10, 15):
            stamp(a)
        rem = min(NQ - 1, j + 3) - (j + 1)
        if j + 1 <= NQ - 1:
            role_wait("q%d" % j, 3 * rem, 4 * rem, None)
        a("s_waitcnt lgkmcnt(0)")
        a("s_barrier")
        if j + 4 < NQ:
            qp_dma(j + 4)
        if j >= 17:
            kv_dma(j - 16, "q%d" % j)
        fs = j & 1
        base = V_FS[fs]
        rd = qp_reads(j + 1, fs ^ 1) if j + 1 < NQ else []
        mf = []
        for ks in range(2):
            for t in range(4):
                mf.append("v_mfma_f32_32x32x16_bf16 %s, %s, %s, %s" % (
                    vr(V_ACC + 16 * t, 16), vr(base + 8 + (ks * 4 + t) * 4), vr(base + 4 * ks), vr(V_ACC + 16 * t, 16)))
        ri = 0
        for m in range(8):
            a(mf[m])
            n = 3 if m < 2 else 2
            for _ in range(n):
                if ri < len(rd):
                    a(rd[ri]); ri += 1
        while ri < len(rd):
            a(rd[ri]); ri += 1
        if j + 1 < NQ:
            qp_addr_adv(j + 1)
    a.c("---- q convert")
    stamp(a)
    a("s_nop 15")
    a("s_nop 3")
    for t in range(4):
        for p in range(8):
            i0 = V_ACC + 16 * t + 2 * p
            a("v_mul_f32 v%d, s%d, v%d" % (i0, S_SC, i0))
            a("v_mul_f32 v%d, s%d, v%d" % (i0 + 1, S_SC, i0 + 1))
            a("v_cvt_pk_bf16_f32 v%d, v%d, v%d" % (V_Q + t * 8 + p, i0, i0 + 1))
    for i in range(64):
        a("v_mov_b32 v%d, 0" % (V_ACC + i))
    a("v_mov_b32 v%d, 0" % V_L)

    def k_reads(stage):
        L = []
        for s in range(8):
            L.append("ds_read_b128 %s, v%d offset:%d" % (vr(V_KV + 4 * s), V_KA0 + (s & 1), (s >> 1) * 64))
        return L
    def v_reads():
        L = []
        for sl in range(2):
            for dt in range(4):
                f = sl * 4 + dt
                for u in range(2):
                    L.append("ds_read_b64_tr_b16 %s, v%d offset:%d" % (vr(V_KV + 4 * f + 2 * u, 2), V_VA, sl * 4352 + u * 512 + dt * 64))
        return L
    def slot_adv(regs, stage_from):
        d = SLOT if (stage_from % 4) != 3 else -3 * SLOT
        for r in regs:
            if d > 0:
                a("v_add_u32 v%d, %d, v%d" % (r, d, r))
            else:
                a("v_subrev_u32 v%d, %d, v%d" % (r, -d, r))

    role_wait("a_pre", None, None, 24)
    a("s_barrier")
    for ins in k_reads(0):
        a(ins)
    slot_adv((V_KA0, V_KA1), 0)
    NT = 16
    rare = []
    for t in range(NT):
        a.c("---- attn stage %d" % t)
        if t in (0, 1, 4, 8, 12):
            stamp(a)
        if t + 1 < NT:
            last_issued = 3 if t == 0 else min(t + 2, NT - 1)
            role_wait("a%d" % t, None, None, 8 * (last_issued - (t + 1)))
        a("s_waitcnt lgkmcnt(0)")
        a("s_barrier")
        if t >= 1 and t + 3 < NT:
            kv_dma(t + 3, "a%d" % t)
        vrd = v_reads()
        S = V_S
        for s in range(8):
            c = ("0" if t == 0 else vr(V_NM, 16)) if s == 0 else vr(S, 16)
            a("v_mfma_f32_32x32x16_bf16 %s, %s, %s, %s" % (vr(S, 16), vr(V_KV + 4 * s), vr(V_Q + 4 * s), c))
            if s >= 1:
                a(vrd[2 * (s - 1)]); a(vrd[2 * (s - 1) + 1])
        a(vrd[14]); a(vrd[15])
        slot_adv((V_VA,), t)
        a("s_nop 7")
        a("s_nop 1")
        T0, T1 = V_T0, V_T1
        a("v_max3_f32 v%d, v%d, v%d, v%d" % (T0, S, S + 1, S + 2))
        a("v_max3_f32 v%d, v%d, v%d, v%d" % (T1, S + 3, S + 4, S + 5))
        a("v_max3_f32 v%d, v%d, v%d, v%d" % (T0, T0, S + 6, S + 7))
        a("v_max3_f32 v%d, v%d, v%d, v%d" % (T1, T1, S + 8, S + 9))
        a("v_max3_f32 v%d, v%d, v%d, v%d" % (T0, T0, S + 10, S + 11))
        a("v_max3_f32 v%d, v%d, v%d, v%d" % (T1, T1, S + 12, S + 13))
        a("v_max3_f32 v%d, v%d, v%d, v%d" % (T0, T0, S + 14, S + 15))
        a("v_max_f32 v%d, v%d, v%d" % (T0, T0, T1))
        if t == 0:
            a("v_mov_b32 v%d, v%d" % (T1, T0))
            a("s_nop 1")
            a("v_permlane32_swap_b32 v%d, v%d" % (T0, T1))
            a("s_nop 1")
            a("v_max_f32 v%d, v%d, v%d" % (T0, T0, T1))
            for i in range(16):
                a("v_sub_f32 v%d, v%d, v%d" % (S + i, S + i, T0))
            for i in range(16):
                a("v_sub_f32 v%d, 0, v%d" % (V_NM + i, T0))
        else:
            a("v_cmp_lt_f32 vcc, 0x41000000, v%d" % T0)
            a("s_cbranch_vccnz L_rare_%d" % t)
            a.lab("L_back_%d" % t)
            R = []
            R.append("L_rare_%d:" % t)
            R.append("    v_mov_b32 v%d, v%d" % (T1, T0))
            R.append("    s_nop 1")
            R.append("    v_permlane32_swap_b32 v%d, v%d" % (T0, T1))
            R.append("    s_nop 1")
            R.append("    v_max_f32 v%d, v%d, v%d" % (T0, T0, T1))
            R.append("    v_max_f32 v%d, 0, v%d" % (T0, T0))
            R.append("    v_exp_f32 v%d, -v%d" % (T1, T0))
            for i in range(16):
                R.append("    v_sub_f32 v%d, v%d, v%d" % (S + i, S + i, T0))
            for i in range(16):
                R.append("    v_sub_f32 v%d, v%d, v%d" % (V_NM + i, V_NM + i, T0))
            for i in range(64):
                R.append("    v_mul_f32 v%d, v%d, v%d" % (V_ACC + i, V_ACC + i, T1))
            R.append("    v_mul_f32 v%d, v%d, v%d" % (V_L, V_L, T1))
            R.append("    s_nop 1")
            R.append("    s_branch L_back_%d" % t)
            rare += R
        for i in range(16):
            a("v_exp_f32 v%d, v%d" % (S + i, S + i))
        for i in range(16):
            a("v_add_f32 v%d, v%d, v%d" % (V_L, V_L, S + i))
        for p in range(4):
            a("v_cvt_pk_bf16_f32 v%d, v%d, v%d" % (S + p, S + 2 * p, S + 2 * p + 1))
        for p in range(4):
            a("v_cvt_pk_bf16_f32 v%d, v%d, v%d" % (S + 8 + p, S + 8 + 2 * p, S + 8 + 2 * p + 1))
        a("s_waitcnt lgkmcnt(0)")
        krd = k_reads(t + 1) if t + 1 < NT else []
        for f in range(8):
            sl, dt = f // 4, f % 4
            a("v_mfma_f32_32x32x16_bf16 %s, %s, %s, %s" % (vr(V_ACC + 16 * dt, 16), vr(V_KV + 4 * f), vr(S + 8 * sl), vr(V_ACC + 16 * dt, 16)))
            if f >= 1 and krd:
                a(krd[f - 1])
        if krd:
            a(krd[7])
            slot_adv((V_KA0, V_KA1), t + 1)
    a.c("---- epilogue")
    stamp(a)
    T0, T1 = V_T0, V_T1
    a("v_mov_b32 v%d, v%d" % (T1, V_L))
    a("s_nop 1")
    a("v_permlane32_swap_b32 v%d, v%d" % (V_L, T1))
    a("s_nop 1")
    a("v_add_f32 v%d, v%d, v%d" % (V_L, V_L, T1))
    a("v_rcp_f32 v%d, v%d" % (V_L, V_L))
    a("s_mul_i32 s%d, s%d, 96" % (S_T0, S_BLK))
    a("s_mul_i32 s%d, s%d, 12" % (S_T1, S_B))
    a("s_add_u32 s%d, s%d, s%d" % (S_T0, S_T0, S_T1))
    a("s_lshl_b32 s%d, s%d, 1" % (S_T1, S_QT))
    a("s_add_u32 s%d, s%d, s%d" % (S_T0, S_T0, S_T1))
    a("s_lshl_b32 s%d, s%d, 7" % (S_T0, S_T0))
    a("s_lshl_b32 s%d, s%d, 1" % (S_T1, S_HP))
    a("s_add_u32 s%d, s%d, s%d" % (S_T1, S_T1, S_HSEL))
    a("s_lshl_b32 s%d, s%d, 2" % (S_T1, S_T1))
    a("s_add_u32 s%d, s%d, s%d" % (S_T0, S_T0, S_T1))
    a("s_lshl_b32 s%d, s%d, 10" % (S_T0, S_T0))
    ln = V_T2
    a("v_and_b32 v%d, 15, v%d" % (T0, ln))
    a("v_bfe_u32 v%d, v%d, 4, 1" % (T1, ln))
    a("v_lshlrev_b32 v%d, 17, v%d" % (T1, T1))
    a("v_lshl_add_u32 v%d, v%d, 4, v%d" % (T0, T0, T1))
    a("v_lshrrev_b32 v%d, 5, v%d" % (T1, ln))
    a("v_lshl_add_u32 v%d, v%d, 8, v%d" % (T0, T1, T0))
    a("s_nop 7")
    for i in range(64):
        a("v_mul_f32 v%d, v%d, v%d" % (V_ACC + i, V_ACC + i, V_L))
    for dt in range(4):
        for half in range(2):
            b0 = V_ACC + 16 * dt + 8 * half
            d = V_Q + (dt * 2 + half) * 4
            for p in range(4):
                a("v_cvt_pk_bf16_f32 v%d, v%d, v%d" % (d + p, b0 + 2 * p, b0 + 2 * p + 1))
            a("buffer_store_dwordx4 %s, v%d, %s, s%d offen offset:%d" % (vr(d), T0, sr(S_WS), S_T0, dt * 1024 + half * 512))
    stamp(a)
    stamp_dump(a)
    a.lab("L_k1_end")
    a("s_endpgm")
    a.L += rare

def gen_k2(a):
    a.lab("oproj_kernel")
    a("s_cmp_ge_u32 s2, 256")
    a("s_cbranch_scc1 L_k2_end")
    a("s_load_dwordx2 s[8:9], s[0:1], 80")
    a("s_load_dwordx2 s[10:11], s[0:1], 96")
    a("s_and_b32 s3, s2, 7")
    a("s_lshr_b32 s4, s2, 3")
    a("s_and_b32 s5, s4, 7")
    a("s_lshr_b32 s4, s4, 3")
    a("s_lshl_b32 s3, s3, 2")
    a("s_add_u32 s4, s4, s3")
    a("s_lshr_b32 s3, s4, 4")
    a("s_and_b32 s4, s4, 15")
    a("v_lshrrev_b32 v1, 6, v0")
    a("v_and_b32 v0, 63, v0")
    a("s_nop 0")
    a("v_readfirstlane_b32 s6, v1")
    a("s_waitcnt lgkmcnt(0)")
    srd(a, 12, 8, SZ_OUT)
    srd(a, 16, 10, WS_BYTES)
    a("v_lshlrev_b32 v1, 4, v0")
    a("s_mul_i32 s20, s3, 96")
    a("s_mul_i32 s21, s4, 6")
    a("s_add_u32 s20, s20, s21")
    a("s_lshl_b32 s20, s20, 7")
    a("s_lshl_b32 s21, s6, 5")
    a("s_add_u32 s20, s20, s21")
    a("s_lshl_b32 s20, s20, 10")
    a("s_mul_i32 s22, s3, 40")
    a("s_mul_i32 s23, s5, 5")
    a("s_add_u32 s22, s22, s23")
    a("s_lshl_b32 s22, s22, 7")
    a("s_add_u32 s22, s22, s21")
    a("s_lshl_b32 s22, s22, 10")
    a("s_add_u32 s22, s22, 0x%x" % WS_WF)
    for i in range(6):
        a("s_add_u32 s%d, s20, %d" % (24 + i, i * 131072))
    for j in range(5):
        a("s_add_u32 s%d, s22, %d" % (30 + j, j * 131072))
    ACC = 0
    FB = 8
    NB = 5
    def ar(b, n=4):
        return "a[%d:%d]" % (b, b + n - 1)
    for i in range(120):
        a("v_accvgpr_write_b32 a%d, 0" % (ACC + i))
    NK = 32
    def loads(ks):
        b = FB + 44 * (ks % NB)
        L = []
        for f in range(11):
            L.append("buffer_load_dwordx4 %s, v1, s[16:19], s%d offen offset:%d" % (vr(b + 4 * f), 24 + f, (ks % 4) * 1024))
        if ks % 4 == 3:
            for f in range(11):
                L.append("s_add_u32 s%d, s%d, 4096" % (24 + f, 24 + f))
        return L
    for ks in range(NB - 1):
        for ins in loads(ks):
            a(ins)
    for ks in range(NK):
        nxt = ks + NB - 1
        ld = loads(nxt) if nxt < NK else []
        outstanding_after = min(NK - 1, ks + NB - 2) - ks
        a("s_waitcnt vmcnt(%d)" % (11 * outstanding_after))
        b = FB + 44 * (ks % NB)
        li = 0
        m = 0
        for j in range(5):
            for i in range(6):
                a("v_mfma_f32_16x16x32_bf16 %s, %s, %s, %s" % (ar(ACC + 4 * (j * 6 + i)), vr(b + 24 + 4 * j), vr(b + 4 * i), ar(ACC + 4 * (j * 6 + i))))
                m += 1
                if li < len(ld) and m >= 2:
                    a(ld[li]); li += 1
        while li < len(ld):
            a(ld[li]); li += 1
    a("s_nop 15")
    a("s_mul_i32 s36, s6, 30720")
    a("v_add_u32 v2, s36, v1")
    for tl in range(30):
        a("ds_write_b128 v2, %s offset:%d" % (ar(ACC + 4 * tl), tl * 1024))
    a("s_lshl_b32 s36, s6, 10")
    a("v_add_u32 v2, s36, v1")
    a("v_add_u32 v5, 61440, v2")
    a("v_and_b32 v3, 15, v0")
    a("v_mul_u32_u24 v3, 2560, v3")
    a("v_lshrrev_b32 v4, 4, v0")
    a("v_lshl_add_u32 v3, v4, 3, v3")
    a("s_mul_i32 s37, s4, %d" % (96 * 2560))
    a("s_mul_i32 s38, s3, 1280")
    a("s_add_u32 s37, s37, s38")
    a("s_mul_i32 s38, s5, 160")
    a("s_add_u32 s37, s37, s38")
    a("s_waitcnt lgkmcnt(0)")
    a("s_barrier")
    for n in range(8):
        if n == 7:
            a("s_cmp_ge_u32 s6, 2")
            a("s_cbranch_scc1 L_k2_end")
        for src_ in range(4):
            a("ds_read_b128 %s, v%d offset:%d" % (vr(FB + 16 * (n % 2) + 4 * src_), 2 if src_ < 2 else 5, (src_ % 2) * 30720 + n * 4096))
        a("s_add_u32 s39, s6, %d" % (4 * n))
        a("s_mul_i32 s40, s39, 43")
        a("s_lshr_b32 s40, s40, 8")
        a("s_mul_i32 s41, s40, 6")
        a("s_sub_u32 s41, s39, s41")
        a("s_mul_i32 s41, s41, %d" % (16 * 2560))
        a("s_lshl_b32 s40, s40, 5")
        a("s_add_u32 s41, s41, s40")
        a("s_add_u32 s41, s41, s37")
        a("s_waitcnt lgkmcnt(0)")
        b = FB + 16 * (n % 2)
        for r in range(4):
            a("v_add_f32 v%d, v%d, v%d" % (b + r, b + r, b + 4 + r))
            a("v_add_f32 v%d, v%d, v%d" % (b + 8 + r, b + 8 + r, b + 12 + r))
        for r in range(4):
            a("v_add_f32 v%d, v%d, v%d" % (b + r, b + r, b + 8 + r))
        a("v_cvt_pk_bf16_f32 v%d, v%d, v%d" % (b + 4, b, b + 1))
        a("v_cvt_pk_bf16_f32 v%d, v%d, v%d" % (b + 5, b + 2, b + 3))
        a("buffer_store_dwordx2 %s, v3, s[12:15], s41 offen" % vr(b + 4, 2))
    a.lab("L_k2_end")
    a("s_endpgm")

def gen_stream(a):
    a.lab("stream_kernel")
    a("s_cmp_ge_u32 s2, 256")
    a("s_cbranch_scc1 L_st_end")
    a("s_lshr_b32 s3, s2, 7")
    a("s_and_b32 s4, s2, 127")
    a("s_mul_i32 s5, s3, 40")
    a("s_add_u32 s6, s0, s5")
    a("s_addc_u32 s7, s1, 0")
    a("s_load_dwordx4 s[8:11], s[6:7], 8")
    a("s_waitcnt lgkmcnt(0)")
    srd(a, 16, 8, SZ_KV)
    srd(a, 20, 10, SZ_KV)
    a("v_lshlrev_b32 v1, 4, v0")
    a("s_lshl_b32 s12, s4, 18")
    for i in range(16):
        a("buffer_load_dwordx4 %s, v1, s[16:19], s12 offen" % vr(4 + 8 * (i % 8)))
        a("buffer_load_dwordx4 %s, v1, s[20:23], s12 offen" % vr(8 + 8 * (i % 8)))
        a("s_add_u32 s12, s12, 16384")
    a("s_waitcnt vmcnt(0)")
    a.lab("L_st_end")
    a("s_endpgm")

def kd(a, name, vgpr, sgpr=102, acc=None):
    a.L.append(".p2align 6")
    a.L.append(".amdhsa_kernel %s" % name)
    a.L.append("  .amdhsa_next_free_vgpr %d" % vgpr)
    a.L.append("  .amdhsa_next_free_sgpr %d" % sgpr)
    a.L.append("  .amdhsa_accum_offset %d" % (acc if acc else (vgpr + 3) // 4 * 4))
    a.L.append("  .amdhsa_group_segment_fixed_size 0")
    a.L.append("  .amdhsa_kernarg_size 104")
    a.L.append("  .amdhsa_user_sgpr_count 2")
    a.L.append("  .amdhsa_user_sgpr_kernarg_segment_ptr 1")
    a.L.append("  .amdhsa_system_sgpr_workgroup_id_x 1")
    a.L.append(".end_amdhsa_kernel")

def main():
    hdr = open("cdna_kernels/%s.s.ref" % NAME).read().split("; Override launch geometry")[0]
    a = A()
    a.L.append(hdr.rstrip("\n"))
    if "--stream" in sys.argv:
        a.L.append("; @launch kernel=stream_kernel grid=(256,1,1) block=(1024,1,1) lds=0")
    a.L.append("; @launch kernel=wprep_kernel grid=(256,1,1) block=(320,1,1) lds=43520")
    a.L.append("; @launch kernel=attn_kernel grid=(256,1,1) block=(768,1,1) lds=%d" % LDS1)
    a.L.append("; @launch kernel=oproj_kernel grid=(256,1,1) block=(256,1,1) lds=122880")
    a.L.append('.amdgcn_target "amdgcn-amd-amdhsa--gfx950"')
    a.L.append(".text")
    for nm, g in (("wprep_kernel", gen_k0), ("attn_kernel", gen_k1), ("oproj_kernel", gen_k2), ("stream_kernel", gen_stream)):
        a.L.append(".globl %s" % nm)
        a.L.append(".p2align 8")
        a.L.append(".type %s,@function" % nm)
        g(a)
    a.L.append('.section .rodata,"a"')
    kd(a, "wprep_kernel", 48)
    kd(a, "stream_kernel", 72)
    kd(a, "attn_kernel", 168)
    kd(a, "oproj_kernel", 228 + 120, acc=228)
    args = [x for x in sys.argv[1:] if not x.startswith("--")]
    out = args[0] if args else "cdna_kernels/%s.s" % NAME
    open(out, "w").write(a.text())

main()
```

```python
import sys

NAME = "concat_heads__gqa_block_cached__mha_block_cached__near_ridge"

class A:
    def __init__(self):
        self.L = []
    def __call__(self, s):
        self.L.append("    " + s)
    def lab(self, s):
        self.L.append(s + ":")
    def c(self, s):
        self.L.append("    ; " + s)
    def text(self):
        return "\n".join(self.L) + "\n"

def vr(b, n=4):
    return "v[%d:%d]" % (b, b + n - 1)
def sr(b, n=4):
    return "s[%d:%d]" % (b, b + n - 1)

WS_OF = 0
OF_BYTES = 2 * 96 * 128 * 1024
WS_WF = OF_BYTES
WF_BYTES = 2 * 40 * 128 * 1024
WS_BYTES = 268435456

SZ_X = 8 * 192 * 640 * 2
SZ_KV = 8 * 32 * 512 * 128 * 2
SZ_W = 640 * 4096 * 2
SZ_OUT = 8 * 192 * 1280 * 2

def srd(a, d, base, size):
    a("s_mov_b32 s%d, s%d" % (d, base))
    a("s_and_b32 s%d, s%d, 0xffff" % (d + 1, base + 1))
    a("s_mov_b32 s%d, 0x%x" % (d + 2, size))
    a("s_mov_b32 s%d, 0x00020000" % (d + 3))

def gen_k0(a):
    a.lab("wprep_kernel")
    a("s_cmp_ge_u32 s2, 256")
    a("s_cbranch_scc1 L_k0_end")
    a("s_lshr_b32 s3, s2, 7")
    a("s_and_b32 s4, s2, 127")
    a("s_mul_i32 s5, s3, 40")
    a("s_add_u32 s6, s0, s5")
    a("s_addc_u32 s7, s1, 0")
    a("s_load_dwordx2 s[8:9], s[6:7], 32")
    a("s_load_dwordx2 s[10:11], s[0:1], 96")
    a("v_lshrrev_b32 v1, 6, v0")
    a("v_and_b32 v0, 63, v0")
    a("s_nop 0")
    a("v_readfirstlane_b32 s12, v1")
    a("s_waitcnt lgkmcnt(0)")
    srd(a, 16, 8, SZ_W)
    srd(a, 20, 10, WS_BYTES)
    a("v_lshrrev_b32 v1, 4, v0")
    a("v_and_b32 v2, 15, v0")
    a("v_mul_u32_u24 v1, 5120, v1")
    a("v_lshl_add_u32 v1, v2, 4, v1")
    a("s_mul_i32 s13, s4, 40960")
    a("s_lshl_b32 s14, s12, 8")
    a("s_add_u32 s13, s13, s14")
    a("s_mul_i32 s15, s12, 8704")
    for P in range(8):
        a("s_add_u32 s24, s13, %d" % ((16 * (P // 4) + P % 4) * 1280))
        a("s_add_u32 m0, s15, %d" % (P * 1088))
        a("s_nop 0")
        a("buffer_load_dwordx4 v1, s[16:19], s24 offen lds")
    a("v_lshrrev_b32 v3, 5, v0")
    a("v_bfe_u32 v4, v0, 4, 1")
    a("v_bfe_u32 v5, v0, 2, 2")
    a("v_and_b32 v6, 3, v0")
    a("v_lshl_add_u32 v3, v3, 2, v5")
    a("v_mul_u32_u24 v3, 1088, v3")
    a("v_lshl_add_u32 v3, v4, 8, v3")
    a("v_lshl_add_u32 v3, v6, 3, v3")
    a("v_add_u32 v3, s15, v3")
    a("s_mul_i32 s25, s3, 40")
    a("s_lshl_b32 s26, s12, 3")
    a("s_add_u32 s25, s25, s26")
    a("s_lshl_b32 s25, s25, 7")
    a("s_add_u32 s25, s25, s4")
    a("s_lshl_b32 s25, s25, 10")
    a("s_add_u32 s25, s25, 0x%x" % WS_WF)
    a("v_lshlrev_b32 v7, 4, v0")
    a("s_waitcnt vmcnt(0)")
    for nt in range(8):
        a("ds_read_b64_tr_b16 %s, v3 offset:%d" % (vr(8 + 4 * nt, 2), nt * 32))
        a("ds_read_b64_tr_b16 %s, v3 offset:%d" % (vr(10 + 4 * nt, 2), nt * 32 + 512))
    a("s_waitcnt lgkmcnt(0)")
    for nt in range(8):
        a("buffer_store_dwordx4 %s, v7, s[20:23], s25 offen" % vr(8 + 4 * nt))
        a("s_add_u32 s25, s25, 0x%x" % (128 * 1024))
    a.lab("L_k0_end")
    a("s_endpgm")

SLOT = 34816
QPB = 29696
QP0 = SLOT
LDS1 = 160 * 1024
V_ACC = 0
V_Q = 64
V_S = 96
V_NM = 112
V_KV = 128
V_KA0, V_KA1, V_VA, V_DK, V_L, V_T0, V_T1, V_T2 = 160, 161, 162, 163, 164, 165, 166, 167
V_FS = [64, 104]
V_XA0, V_XA1, V_WA, V_DQ = 144, 145, 146, 147
S_BLK, S_B, S_HP, S_W, S_HSEL, S_QT = 3, 4, 5, 6, 7, 44
S_X, S_K, S_V, S_WQ, S_WS = 20, 24, 28, 32, 40
S_D1, S_D2 = 48, 52
S_G1, S_G1S, S_G1A, S_L1, S_L1S = 56, 57, 58, 59, 60
S_G2, S_G2S, S_L2 = 61, 62, 63
S_T0, S_T1, S_T2, S_T3 = 64, 65, 66, 67
S_ROLE = 68
S_SC = 70

STAMPS = "--stamps" in sys.argv
_stamp_n = [0]
def stamp(a):
    if not STAMPS:
        return
    n = _stamp_n[0]; _stamp_n[0] += 1
    a("%s s[%d:%d]" % ("s_memrealtime" if "--rt" in sys.argv else "s_memtime", 72 + 2 * n, 73 + 2 * n))

def stamp_dump(a, S_W=6, tag="k1"):
    if not STAMPS:
        return
    n = _stamp_n[0]
    _stamp_n[0] = 0
    a("s_waitcnt lgkmcnt(0)")
    a("s_cmp_lg_u32 s2, 0")
    a("s_cbranch_scc1 L_sd_e_%s" % tag)
    if tag == "k1":
        a("s_and_b32 s64, s%d, 3" % S_W)
        a("s_cmp_lg_u32 s64, 0")
        a("s_cbranch_scc1 L_sd_e_%s" % tag)
    a("s_load_dwordx2 s[10:11], s[0:1], 88")
    a("s_waitcnt lgkmcnt(0)")
    srd(a, 12, 10, 256)
    a("s_lshl_b32 s64, s%d, %d" % (S_W, 4 if tag == "k1" else 6))
    a("v_mov_b32 v1, 0")
    for i in range(n):
        a("s_sub_u32 s65, s%d, s72" % (72 + 2 * i))
        a("v_mov_b32 v2, s65")
        a("buffer_store_dword v2, v1, s[12:15], s64 offen offset:%d" % (4 * i))
    a.lab("L_sd_e_%s" % tag)

TOUCH_STRIDE = 128
NTOUCH = 8
for x in sys.argv:
    if x.startswith("--touch="):
        TOUCH_STRIDE = int(x.split("=")[1])
    if x.startswith("--ntouch="):
        NTOUCH = int(x.split("=")[1])
TPACE = 1
NPRE = 2
PRIO = None
for x in sys.argv:
    if x.startswith("--prio="):
        PRIO = [int(c) for c in x.split("=")[1]]
for x in sys.argv:
    if x.startswith("--tpace="):
        TPACE = int(x.split("=")[1])
    if x.startswith("--npre="):
        NPRE = int(x.split("=")[1])
V_DW, V_WR, V_WST, V_TCH, V_WD = 148, 149, 150, 151, 152
S_WO = 36
S_WG, S_WL, S_WSO = 47, 45, 46
WTAIL = 153600

def gen_k1(a):
    a.lab("attn_kernel")
    a("s_cmp_ge_u32 s2, 256")
    a("s_cbranch_scc1 L_k1_end")
    stamp(a)
    a("s_bfe_u32 s%d, s2, 0x10002" % S_BLK)
    a("s_lshr_b32 s%d, s2, 5" % S_B)
    a("s_and_b32 s%d, s2, 3" % S_HP)
    a("s_lshl_b32 s%d, s%d, 2" % (S_HP, S_HP))
    a("s_bfe_u32 s%d, s2, 0x20003" % S_T0)
    a("s_add_u32 s%d, s%d, s%d" % (S_HP, S_HP, S_T0))
    a("s_mul_i32 s%d, s%d, 40" % (S_T0, S_BLK))
    a("s_add_u32 s8, s0, s%d" % S_T0)
    a("s_addc_u32 s9, s1, 0")
    a("s_load_dwordx8 s[12:19], s[8:9], 0")
    a("s_load_dwordx2 s[10:11], s[0:1], 96")
    a("s_lshr_b32 s%d, s2, 7" % S_T1)
    a("s_mul_i32 s%d, s%d, 40" % (S_T0, S_T1))
    a("s_add_u32 s8, s0, s%d" % S_T0)
    a("s_addc_u32 s9, s1, 0")
    a("s_load_dwordx2 s[46:47], s[8:9], 32")
    a("v_lshrrev_b32 v1, 6, v0")
    a("v_and_b32 v0, 63, v0")
    a("s_nop 0")
    a("v_readfirstlane_b32 s%d, v1" % S_W)
    a("s_nop 3")
    a("s_cmp_ge_u32 s%d, 6" % S_W)
    a("s_cselect_b32 s%d, 1, 0" % S_HSEL)
    a("s_mul_i32 s%d, s%d, 6" % (S_T0, S_HSEL))
    a("s_sub_u32 s%d, s%d, s%d" % (S_QT, S_W, S_T0))
    a("s_lshr_b32 s%d, s%d, 2" % (S_ROLE, S_W))
    a("s_mov_b32 s%d, 0x3e0293ee" % S_SC)
    a("s_mov_b32 s%d, 0x3e0293ee" % (S_SC + 1))
    a("s_waitcnt lgkmcnt(0)")
    srd(a, S_X, 12, SZ_X)
    srd(a, S_K, 14, SZ_KV)
    srd(a, S_V, 16, SZ_KV)
    srd(a, S_WQ, 18, SZ_W)
    srd(a, S_WS, 10, WS_BYTES)
    srd(a, S_WO, 46, SZ_W)
    a("v_and_b32 v1, 31, v0")
    a("v_lshrrev_b32 v2, 5, v0")
    a("v_bfe_u32 v3, v0, 4, 1")
    a("v_bfe_u32 v4, v0, 2, 2")
    a("v_and_b32 v5, 3, v0")
    a("s_cmp_eq_u32 s%d, 0" % S_ROLE)
    for i in range(3):
        a("s_cselect_b32 s%d, s%d, s%d" % (S_D1 + i, S_X + i, S_WQ + i))
    a("s_mov_b32 s%d, 0x00020000" % (S_D1 + 3))
    a("s_mov_b32 s%d, 8192" % S_T0)
    a("s_cselect_b32 s%d, 20480, s%d" % (S_G1S, S_T0))
    a("s_cselect_b32 s%d, 64, 262144" % S_G1A)
    a("s_mov_b32 s%d, 1088" % S_T0)
    a("s_cselect_b32 s%d, 1024, s%d" % (S_L1S, S_T0))
    a("s_mul_i32 s%d, s%d, 192" % (S_T0, S_B))
    a("s_mul_i32 s%d, s%d, 48" % (S_T1, S_W))
    a("s_add_u32 s%d, s%d, s%d" % (S_T0, S_T0, S_T1))
    a("s_mul_i32 s%d, s%d, 1280" % (S_T0, S_T0))
    a("s_mul_i32 s%d, s%d, 3072" % (S_T1, S_W))
    a("s_add_u32 s%d, s%d, %d" % (S_T1, S_T1, QP0))
    a("s_sub_u32 s%d, s%d, 4" % (S_T2, S_W))
    a("s_lshl_b32 s%d, s%d, 16" % (S_T3, S_T2))
    a("s_lshl_b32 s98, s%d, 9" % S_HP)
    a("s_add_u32 s%d, s%d, s98" % (S_T3, S_T3))
    a("s_mul_i32 s%d, s%d, 4352" % (S_T2, S_T2))
    a("s_add_u32 s%d, s%d, %d" % (S_T2, S_T2, QP0 + 12288))
    a("s_cmp_eq_u32 s%d, 0" % S_ROLE)
    a("s_cselect_b32 s%d, s%d, s%d" % (S_G1, S_T0, S_T3))
    a("s_cselect_b32 s%d, s%d, s%d" % (S_L1, S_T1, S_T2))
    a("v_lshrrev_b32 v6, 2, v0")
    a("v_bfe_u32 v7, v0, 4, 2")
    a("v_xor_b32 v7, v5, v7")
    a("v_mul_u32_u24 v6, 1280, v6")
    a("v_lshl_add_u32 v6, v7, 4, v6")
    a("v_lshlrev_b32 v7, 15, v2")
    a("v_lshl_add_u32 v7, v1, 4, v7")
    a("s_cselect_b64 vcc, -1, 0")
    a("v_cndmask_b32 v%d, v7, v6, vcc" % V_DQ)
    a("s_sub_u32 s%d, s%d, 8" % (S_T0, S_W))
    a("s_and_b32 s%d, s%d, 1" % (S_T1, S_T0))
    a("s_lshl_b32 s%d, s%d, 5" % (S_T2, S_B))
    a("s_lshl_b32 s%d, s%d, 1" % (S_T3, S_HP))
    a("s_add_u32 s%d, s%d, s%d" % (S_T2, S_T2, S_T3))
    a("s_add_u32 s%d, s%d, s%d" % (S_T2, S_T2, S_T1))
    a("s_lshl_b32 s%d, s%d, 17" % (S_G2, S_T2))
    a("s_mul_i32 s%d, s%d, 8704" % (S_L2, S_T0))
    a("s_and_b32 s%d, s2, 127" % S_T1)
    a("s_mul_i32 s%d, s%d, 40960" % (S_WG, S_T1))
    a("s_lshl_b32 s%d, s%d, 8" % (S_T2, S_T0))
    a("s_add_u32 s%d, s%d, s%d" % (S_WG, S_WG, S_T2))
    a("s_lshr_b32 s%d, s2, 7" % S_T2)
    a("s_mul_i32 s%d, s%d, 40" % (S_T2, S_T2))
    a("s_lshl_b32 s%d, s%d, 3" % (S_T3, S_T0))
    a("s_add_u32 s%d, s%d, s%d" % (S_T2, S_T2, S_T3))
    a("s_lshl_b32 s%d, s%d, 7" % (S_T2, S_T2))
    a("s_add_u32 s%d, s%d, s%d" % (S_T2, S_T2, S_T1))
    a("s_lshl_b32 s%d, s%d, 10" % (S_T2, S_T2))
    a("s_add_u32 s%d, s%d, 0x%x" % (S_WSO, S_T2, WS_WF))
    a("s_cmp_lt_u32 s%d, 10" % S_W)
    for i in range(3):
        a("s_cselect_b32 s%d, s%d, s%d" % (S_D2 + i, S_K + i, S_V + i))
    a("s_mov_b32 s%d, 0x00020000" % (S_D2 + 3))
    a("v_lshrrev_b32 v6, 4, v0")
    a("v_and_b32 v7, 15, v0")
    a("v_xor_b32 v8, v7, v6")
    a("v_lshlrev_b32 v8, 4, v8")
    a("v_lshl_add_u32 v8, v6, 8, v8")
    a("v_lshlrev_b32 v7, 4, v7")
    a("v_mul_u32_u24 v9, 5120, v6")
    a("v_add_u32 v%d, v9, v7" % V_DW)
    a("v_lshl_add_u32 v7, v6, 10, v7")
    a("s_cselect_b64 vcc, -1, 0")
    a("v_cndmask_b32 v%d, v7, v8, vcc" % V_DK)
    a("v_mul_u32_u24 v%d, %d, v0" % (V_TCH, TOUCH_STRIDE))

    r2 = []
    def r2_wait_n(tag):
        idx = max(i for i, t in enumerate(r2) if t == tag)
        return len(r2) - 1 - idx

    def qp_dma(stage):
        buf = stage % 4
        lab = "L_qd_%d" % stage
        a("s_cmp_ge_u32 s%d, 2" % S_ROLE)
        a("s_cbranch_scc1 %s_e" % lab)
        a("s_mov_b32 s%d, s%d" % (S_T0, S_G1))
        a("s_add_u32 s%d, s%d, %d" % (S_T1, S_L1, buf * QPB))
        for k in range(4):
            if k == 3:
                a("s_cmp_eq_u32 s%d, 0" % S_ROLE)
                a("s_cbranch_scc1 %s_x" % lab)
            a("s_mov_b32 m0, s%d" % S_T1)
            a("s_nop 0")
            a("buffer_load_dwordx4 v%d, %s, s%d offen lds" % (V_DQ, sr(S_D1), S_T0))
            if k < 3:
                a("s_add_u32 s%d, s%d, s%d" % (S_T0, S_T0, S_G1S))
                a("s_add_u32 s%d, s%d, s%d" % (S_T1, S_T1, S_L1S))
        a.lab(lab + "_x")
        a("s_add_u32 s%d, s%d, s%d" % (S_G1, S_G1, S_G1A))
        a.lab(lab + "_e")

    def r2_begin(tag):
        a("s_cmp_lt_u32 s%d, 2" % S_ROLE)
        a("s_cbranch_scc1 L_r2_%s" % tag)
    def r2_end(tag):
        a.lab("L_r2_%s" % tag)

    def kv_dma(stage, tag):
        slot = stage % 4
        lab = "L_kd_%s" % tag
        r2_begin(lab)
        a("s_cmp_lt_u32 s%d, 10" % S_W)
        a("s_cbranch_scc0 %s_v" % lab)
        for P in range(8):
            a("s_add_u32 s%d, s%d, %d" % (S_T0, S_G2, stage * 8192 + P * 1024))
            a("s_add_u32 m0, s%d, %d" % (S_L2, slot * SLOT + P * 1088))
            a("s_nop 0")
            a("buffer_load_dwordx4 v%d, %s, s%d offen lds" % (V_DK, sr(S_D2), S_T0))
        a("s_branch L_r2_%s" % lab)
        a.lab(lab + "_v")
        for P in range(8):
            a("s_add_u32 s%d, s%d, %d" % (S_T0, S_G2, stage * 8192 + (16 * (P // 4) + P % 4) * 256))
            a("s_add_u32 m0, s%d, %d" % (S_L2, slot * SLOT + P * 1088))
            a("s_nop 0")
            a("buffer_load_dwordx4 v%d, %s, s%d offen lds" % (V_DK, sr(S_D2), S_T0))
        r2_end(lab)
        r2.extend(["kv%d" % stage] * 8)

    def touch(stage, tag):
        n = 8192 // (64 * TOUCH_STRIDE)
        r2_begin("t" + tag)
        for k in range(n):
            a("s_add_u32 s%d, s%d, %d" % (S_T0, S_G2, stage * 8192 + k * 64 * TOUCH_STRIDE))
            a("buffer_load_dword v%d, v%d, %s, s%d offen" % (V_T0, V_TCH, sr(S_D2), S_T0))
            r2.append("touch")
        r2_end("t" + tag)

    def wo_dma(tile4):
        for P in range(8):
            if tile4:
                a("s_add_u32 s%d, s%d, %d" % (S_T0, S_WG, 1024 + (16 * (P // 4) + P % 4) * 1280))
                a("s_mov_b32 m0, %d" % (WTAIL + P * 1088))
            else:
                a("s_add_u32 s%d, s%d, %d" % (S_T0, S_WG, (16 * (P // 4) + P % 4) * 1280))
                a("s_add_u32 m0, s%d, %d" % (S_L2, P * 1088))
            a("s_nop 0")
            a("buffer_load_dwordx4 v%d, %s, s%d offen lds" % (V_DW, sr(S_WO), S_T0))

    def wo_batch(bi, tile4):
        for q in range(2):
            nt = 2 * bi + q
            base = WTAIL if tile4 else 0
            a("ds_read_b64_tr_b16 %s, v%d offset:%d" % (vr(V_WD + 4 * q, 2), V_WR + (1 if tile4 else 0) * 0, nt * 32))
            a("ds_read_b64_tr_b16 %s, v%d offset:%d" % (vr(V_WD + 4 * q + 2, 2), V_WR, nt * 32 + 512))
        a("s_waitcnt lgkmcnt(0)")
        for q in range(2):
            nt = 2 * bi + q
            a("s_add_u32 s%d, s%d, %d" % (S_T0, S_WSO, (nt + (32 if tile4 else 0)) * 131072))
            a("buffer_store_dwordx4 %s, v%d, %s, s%d offen" % (vr(V_WD + 4 * q), V_WST, sr(S_WS), S_T0))

    def role_wait(tag, n0, n1, n2):
        lab = "L_rw_%s" % tag
        vals = [n0, n1, n2]
        for r in range(3):
            if vals[r] is None:
                continue
            a("s_cmp_lg_u32 s%d, %d" % (S_ROLE, r))
            a("s_cbranch_scc1 %s_%d" % (lab, r))
            a("s_waitcnt vmcnt(%d)" % vals[r])
            a.lab("%s_%d" % (lab, r))

    for st in range(3):
        qp_dma(st)
    r2_begin("wo")
    a("s_cmp_lg_u32 s%d, 8" % S_W)
    a("s_cbranch_scc1 L_wo4_skip")
    wo_dma(True)
    a.lab("L_wo4_skip")
    wo_dma(False)
    r2_end("wo")
    r2.extend(["wo"] * 8)
    tq = list(range(NTOUCH))
    for i in range(NPRE):
        if tq: touch(tq.pop(0), "p%d" % i)
    a("s_lshl_b32 s%d, s%d, 5" % (S_T0, S_QT))
    a("v_add_u32 v6, s%d, v1" % S_T0)
    a("v_bfe_u32 v7, v6, 2, 2")
    a("v_xor_b32 v8, v2, v7")
    a("v_lshlrev_b32 v6, 6, v6")
    a("v_lshl_add_u32 v%d, v8, 4, v6" % V_XA0)
    a("v_xor_b32 v8, 2, v8")
    a("v_lshl_add_u32 v%d, v8, 4, v6" % V_XA1)
    a("v_add_u32 v%d, %d, v%d" % (V_XA0, QP0, V_XA0))
    a("v_add_u32 v%d, %d, v%d" % (V_XA1, QP0, V_XA1))
    a("v_lshl_add_u32 v6, v2, 2, v4")
    a("v_mul_u32_u24 v6, 1088, v6")
    a("v_lshl_add_u32 v6, v3, 5, v6")
    a("v_and_b32 v7, 1, v5")
    a("v_lshl_add_u32 v6, v7, 4, v6")
    a("v_lshrrev_b32 v7, 1, v5")
    a("v_lshl_add_u32 v6, v7, 3, v6")
    a("s_lshl_b32 s%d, s%d, 8" % (S_T0, S_HSEL))
    a("s_add_u32 s%d, s%d, %d" % (S_T0, S_T0, QP0 + 12288))
    a("v_add_u32 v%d, s%d, v6" % (V_WA, S_T0))
    a("v_lshrrev_b32 v6, 2, v1")
    a("v_mul_u32_u24 v6, 1088, v6")
    a("v_and_b32 v7, 3, v1")
    a("v_lshl_add_u32 v6, v7, 8, v6")
    a("v_xor_b32 v8, v2, v7")
    a("s_mul_i32 s%d, s%d, 8704" % (S_T0, S_HSEL))
    a("v_add_u32 v6, s%d, v6" % S_T0)
    a("v_lshl_add_u32 v%d, v8, 4, v6" % V_KA0)
    a("v_xor_b32 v8, 2, v8")
    a("v_lshl_add_u32 v%d, v8, 4, v6" % V_KA1)
    a("v_mul_u32_u24 v6, 1088, v4")
    a("v_lshl_add_u32 v6, v2, 8, v6")
    a("v_lshl_add_u32 v6, v3, 5, v6")
    a("v_lshl_add_u32 v6, v5, 3, v6")
    a("s_add_u32 s%d, s%d, 17408" % (S_T0, S_T0))
    a("v_add_u32 v%d, s%d, v6" % (V_VA, S_T0))
    a("v_lshl_add_u32 v6, v2, 2, v4")
    a("v_mul_u32_u24 v6, 1088, v6")
    a("v_lshl_add_u32 v6, v3, 8, v6")
    a("v_lshl_add_u32 v6, v5, 3, v6")
    a("v_add_u32 v%d, s%d, v6" % (V_WR, S_L2))
    a("v_lshlrev_b32 v%d, 4, v0" % V_WST)
    a("v_mov_b32 v%d, v0" % V_T2)

    def qp_reads(stage, fs):
        base = V_FS[fs]
        L = []
        for ks in range(2):
            L.append("ds_read_b128 %s, v%d" % (vr(base + 4 * ks), V_XA0 + ks))
            for t in range(4):
                d = base + 8 + (ks * 4 + t) * 4
                for u in range(2):
                    L.append("ds_read_b64_tr_b16 %s, v%d offset:%d" % (vr(d + 2 * u, 2), V_WA, ks * 8704 + u * 512 + t * 64))
        return L

    def qp_addr_adv(stage_from):
        d = QPB if (stage_from % 4) != 3 else -3 * QPB
        for r in (V_XA0, V_XA1, V_WA):
            if d > 0:
                a("v_add_u32 v%d, %d, v%d" % (r, d, r))
            else:
                a("v_subrev_u32 v%d, %d, v%d" % (r, -d, r))

    role_wait("pre", 6, 8, None)
    a("s_barrier")
    stamp(a)
    for ins in qp_reads(0, 0):
        a(ins)
    qp_addr_adv(0)
    NQ = 20
    WO_IT = 6
    for j in range(NQ):
        a.c("---- qproj iter %d" % j)
        if j in (5, 10, 15):
            stamp(a)
        if j + 1 <= NQ - 1:
            rem = 1 if j + 2 <= NQ - 1 else 0
            role_wait("q%d" % j, 3 * rem, 4 * rem, None)
        a("s_barrier")
        if j + 3 < NQ:
            qp_dma(j + 3)
        if tq and j % TPACE == 0:
            touch(tq.pop(0), "q%d" % j)
        if WO_IT <= j < WO_IT + 4:
            r2_begin("wb%d" % j)
            if j == WO_IT:
                a("s_waitcnt vmcnt(%d)" % r2_wait_n("wo"))
            wo_batch(j - WO_IT, False)
            r2_end("wb%d" % j)
            r2.extend(["wst"] * 2)
        if j == WO_IT + 4:
            kv_dma(0, "q%d" % j)
            a("s_cmp_lg_u32 s%d, 8" % S_W)
            a("s_cbranch_scc1 L_wo4b_skip")
            a("v_subrev_u32 v%d, s%d, v%d" % (V_WR, S_L2, V_WR))
            a("v_add_u32 v%d, %d, v%d" % (V_WR, WTAIL, V_WR))
            for bi in range(4):
                wo_batch(bi, True)
            a.lab("L_wo4b_skip")
        if j >= 18:
            kv_dma(j - 17, "q%d" % j)
        a("s_waitcnt lgkmcnt(0)")
        fs = j & 1
        base = V_FS[fs]
        rd = qp_reads(j + 1, fs ^ 1) if j + 1 < NQ else []
        mf = []
        for ks in range(2):
            for t in range(4):
                c = "0" if (j == 0 and ks == 0) else vr(V_ACC + 16 * t, 16)
                mf.append("v_mfma_f32_32x32x16_bf16 %s, %s, %s, %s" % (
                    vr(V_ACC + 16 * t, 16), vr(base + 8 + (ks * 4 + t) * 4), vr(base + 4 * ks), c))
        ri = 0
        for m in range(8):
            a(mf[m])
            n = 3 if m < 2 else 2
            for _ in range(n):
                if ri < len(rd):
                    a(rd[ri]); ri += 1
        while ri < len(rd):
            a(rd[ri]); ri += 1
        if j + 1 < NQ:
            qp_addr_adv(j + 1)
    a.c("---- q convert")
    stamp(a)
    a("s_barrier")
    kv_dma(3, "a_pre")
    role_wait("a_pre2", None, None, r2_wait_n("kv0"))
    a("s_nop 15")
    for t in range(4):
        for p in range(8):
            i0 = V_ACC + 16 * t + 2 * p
            a("v_pk_mul_f32 %s, %s, %s" % (vr(i0, 2), vr(i0, 2), sr(S_SC, 2)))
            a("v_cvt_pk_bf16_f32 v%d, v%d, v%d" % (V_Q + t * 8 + p, i0, i0 + 1))
    a("v_mov_b32 v%d, 0" % V_L)

    def k_reads(stage):
        L = []
        for s in range(8):
            L.append("ds_read_b128 %s, v%d offset:%d" % (vr(V_KV + 4 * s), V_KA0 + (s & 1), (s >> 1) * 64))
        return L
    def v_reads():
        L = []
        for sl in range(2):
            for dt in range(4):
                f = sl * 4 + dt
                for u in range(2):
                    L.append("ds_read_b64_tr_b16 %s, v%d offset:%d" % (vr(V_KV + 4 * f + 2 * u, 2), V_VA, sl * 4352 + u * 512 + dt * 64))
        return L
    def slot_adv(regs, stage_from):
        d = SLOT if (stage_from % 4) != 3 else -3 * SLOT
        for r in regs:
            if d > 0:
                a("v_add_u32 v%d, %d, v%d" % (r, d, r))
            else:
                a("v_subrev_u32 v%d, %d, v%d" % (r, -d, r))

    a("s_barrier")
    for ins in k_reads(0):
        a(ins)
    slot_adv((V_KA0, V_KA1), 0)
    NT = 16
    rare = []
    for t in range(NT):
        a.c("---- attn stage %d" % t)
        if t in (0, 1, 4, 8, 12):
            stamp(a)
        if t + 1 < NT:
            role_wait("a%d" % t, None, None, r2_wait_n("kv%d" % (t + 1)))
        a("s_barrier")
        if t >= 1 and t + 3 < NT:
            kv_dma(t + 3, "a%d" % t)
        if PRIO: a("s_setprio %d" % PRIO[0])
        a("s_waitcnt lgkmcnt(0)")
        vrd = v_reads()
        S = V_S
        for s in range(8):
            c = ("0" if t == 0 else vr(V_NM, 16)) if s == 0 else vr(S, 16)
            a("v_mfma_f32_32x32x16_bf16 %s, %s, %s, %s" % (vr(S, 16), vr(V_KV + 4 * s), vr(V_Q + 4 * s), c))
            if s >= 1:
                a(vrd[2 * (s - 1)]); a(vrd[2 * (s - 1) + 1])
        a(vrd[14]); a(vrd[15])
        slot_adv((V_VA,), t)
        if PRIO: a("s_setprio %d" % PRIO[1])
        a("s_nop 7")
        a("s_nop 1")
        T0, T1 = V_T0, V_T1
        a("v_max3_f32 v%d, v%d, v%d, v%d" % (T0, S, S + 1, S + 2))
        a("v_max3_f32 v%d, v%d, v%d, v%d" % (T1, S + 3, S + 4, S + 5))
        a("v_max3_f32 v%d, v%d, v%d, v%d" % (T0, T0, S + 6, S + 7))
        a("v_max3_f32 v%d, v%d, v%d, v%d" % (T1, T1, S + 8, S + 9))
        a("v_max3_f32 v%d, v%d, v%d, v%d" % (T0, T0, S + 10, S + 11))
        a("v_max3_f32 v%d, v%d, v%d, v%d" % (T1, T1, S + 12, S + 13))
        a("v_max3_f32 v%d, v%d, v%d, v%d" % (T0, T0, S + 14, S + 15))
        a("v_max_f32 v%d, v%d, v%d" % (T0, T0, T1))
        if t == 0:
            a("v_mov_b32 v%d, v%d" % (T1, T0))
            a("s_nop 1")
            a("v_permlane32_swap_b32 v%d, v%d" % (T0, T1))
            a("s_nop 1")
            a("v_max_f32 v%d, v%d, v%d" % (T0, T0, T1))
            for i in range(16):
                a("v_sub_f32 v%d, v%d, v%d" % (S + i, S + i, T0))
            for i in range(16):
                a("v_sub_f32 v%d, 0, v%d" % (V_NM + i, T0))
        else:
            a("v_cmp_lt_f32 vcc, 0x41000000, v%d" % T0)
            a("s_cbranch_vccnz L_rare_%d" % t)
            a.lab("L_back_%d" % t)
            R = []
            R.append("L_rare_%d:" % t)
            R.append("    v_mov_b32 v%d, v%d" % (T1, T0))
            R.append("    s_nop 1")
            R.append("    v_permlane32_swap_b32 v%d, v%d" % (T0, T1))
            R.append("    s_nop 1")
            R.append("    v_max_f32 v%d, v%d, v%d" % (T0, T0, T1))
            R.append("    v_max_f32 v%d, 0, v%d" % (T0, T0))
            R.append("    v_exp_f32 v%d, -v%d" % (T1, T0))
            for i in range(16):
                R.append("    v_sub_f32 v%d, v%d, v%d" % (S + i, S + i, T0))
            for i in range(16):
                R.append("    v_sub_f32 v%d, v%d, v%d" % (V_NM + i, V_NM + i, T0))
            for i in range(64):
                R.append("    v_mul_f32 v%d, v%d, v%d" % (V_ACC + i, V_ACC + i, T1))
            R.append("    v_mul_f32 v%d, v%d, v%d" % (V_L, V_L, T1))
            R.append("    s_nop 1")
            R.append("    s_branch L_back_%d" % t)
            rare += R
        for i in range(16):
            a("v_exp_f32 v%d, v%d" % (S + i, S + i))
        for i in range(16):
            a("v_add_f32 v%d, v%d, v%d" % (V_L, V_L, S + i))
        for p in range(4):
            a("v_cvt_pk_bf16_f32 v%d, v%d, v%d" % (S + p, S + 2 * p, S + 2 * p + 1))
        for p in range(4):
            a("v_cvt_pk_bf16_f32 v%d, v%d, v%d" % (S + 8 + p, S + 8 + 2 * p, S + 8 + 2 * p + 1))
        if PRIO: a("s_setprio %d" % PRIO[2])
        a("s_waitcnt lgkmcnt(0)")
        krd = k_reads(t + 1) if t + 1 < NT else []
        for f in range(8):
            sl, dt = f // 4, f % 4
            c = "0" if (t == 0 and sl == 0) else vr(V_ACC + 16 * dt, 16)
            a("v_mfma_f32_32x32x16_bf16 %s, %s, %s, %s" % (vr(V_ACC + 16 * dt, 16), vr(V_KV + 4 * f), vr(S + 8 * sl), c))
            if f >= 1 and krd:
                a(krd[f - 1])
        if krd:
            a(krd[7])
            slot_adv((V_KA0, V_KA1), t + 1)
    a.c("---- epilogue")
    stamp(a)
    T0, T1 = V_T0, V_T1
    a("v_mov_b32 v%d, v%d" % (T1, V_L))
    a("s_nop 1")
    a("v_permlane32_swap_b32 v%d, v%d" % (V_L, T1))
    a("s_nop 1")
    a("v_add_f32 v%d, v%d, v%d" % (V_L, V_L, T1))
    a("v_rcp_f32 v%d, v%d" % (V_L, V_L))
    a("s_mul_i32 s%d, s%d, 96" % (S_T0, S_BLK))
    a("s_mul_i32 s%d, s%d, 12" % (S_T1, S_B))
    a("s_add_u32 s%d, s%d, s%d" % (S_T0, S_T0, S_T1))
    a("s_lshl_b32 s%d, s%d, 1" % (S_T1, S_QT))
    a("s_add_u32 s%d, s%d, s%d" % (S_T0, S_T0, S_T1))
    a("s_lshl_b32 s%d, s%d, 7" % (S_T0, S_T0))
    a("s_lshl_b32 s%d, s%d, 1" % (S_T1, S_HP))
    a("s_add_u32 s%d, s%d, s%d" % (S_T1, S_T1, S_HSEL))
    a("s_lshl_b32 s%d, s%d, 2" % (S_T1, S_T1))
    a("s_add_u32 s%d, s%d, s%d" % (S_T0, S_T0, S_T1))
    a("s_lshl_b32 s%d, s%d, 10" % (S_T0, S_T0))
    ln = V_T2
    a("v_and_b32 v%d, 15, v%d" % (T0, ln))
    a("v_bfe_u32 v%d, v%d, 4, 1" % (T1, ln))
    a("v_lshlrev_b32 v%d, 17, v%d" % (T1, T1))
    a("v_lshl_add_u32 v%d, v%d, 4, v%d" % (T0, T0, T1))
    a("v_lshrrev_b32 v%d, 5, v%d" % (T1, ln))
    a("v_lshl_add_u32 v%d, v%d, 8, v%d" % (T0, T1, T0))
    a("s_nop 7")
    for dt in range(4):
        for half in range(2):
            b0 = V_ACC + 16 * dt + 8 * half
            d = V_Q + (dt * 2 + half) * 4
            for p in range(4):
                a("v_mul_f32 v%d, v%d, v%d" % (b0 + 2 * p, b0 + 2 * p, V_L))
                a("v_mul_f32 v%d, v%d, v%d" % (b0 + 2 * p + 1, b0 + 2 * p + 1, V_L))
                a("v_cvt_pk_bf16_f32 v%d, v%d, v%d" % (d + p, b0 + 2 * p, b0 + 2 * p + 1))
            a("buffer_store_dwordx4 %s, v%d, %s, s%d offen offset:%d" % (vr(d), T0, sr(S_WS), S_T0, dt * 1024 + half * 512))
    stamp(a)
    stamp_dump(a)
    a.lab("L_k1_end")
    a("s_endpgm")
    a.L += rare

def gen_k2(a):
    a.lab("oproj_kernel")
    a("s_cmp_ge_u32 s2, 256")
    a("s_cbranch_scc1 L_k2_end")
    stamp(a)
    a("s_load_dwordx2 s[8:9], s[0:1], 80")
    a("s_load_dwordx2 s[10:11], s[0:1], 96")
    a("s_and_b32 s3, s2, 7")
    a("s_lshr_b32 s4, s2, 3")
    a("s_and_b32 s5, s4, 7")
    a("s_lshr_b32 s4, s4, 3")
    a("s_lshl_b32 s3, s3, 2")
    a("s_add_u32 s4, s4, s3")
    a("s_lshr_b32 s3, s4, 4")
    a("s_and_b32 s4, s4, 15")
    if "--k2same" in sys.argv:
        a("s_mov_b32 s42, s3"); a("s_mov_b32 s43, s4"); a("s_mov_b32 s44, s5")
    a("v_lshrrev_b32 v1, 6, v0")
    a("v_and_b32 v0, 63, v0")
    a("s_nop 0")
    a("v_readfirstlane_b32 s6, v1")
    a("s_waitcnt lgkmcnt(0)")
    srd(a, 12, 8, SZ_OUT)
    srd(a, 16, 10, WS_BYTES)
    a("v_lshlrev_b32 v1, 4, v0")
    if "--k2same" in sys.argv:
        a("s_mov_b32 s3, 0"); a("s_mov_b32 s4, 0"); a("s_mov_b32 s5, 0")
    a("s_mul_i32 s20, s3, 96")
    a("s_mul_i32 s21, s4, 6")
    a("s_add_u32 s20, s20, s21")
    a("s_lshl_b32 s20, s20, 7")
    a("s_lshl_b32 s21, s6, 5")
    a("s_add_u32 s20, s20, s21")
    a("s_lshl_b32 s20, s20, 10")
    a("s_mul_i32 s22, s3, 40")
    a("s_mul_i32 s23, s5, 5")
    a("s_add_u32 s22, s22, s23")
    a("s_lshl_b32 s22, s22, 7")
    a("s_add_u32 s22, s22, s21")
    a("s_lshl_b32 s22, s22, 10")
    a("s_add_u32 s22, s22, 0x%x" % WS_WF)
    for i in range(6):
        a("s_add_u32 s%d, s20, %d" % (24 + i, i * 131072))
    for j in range(5):
        a("s_add_u32 s%d, s22, %d" % (30 + j, j * 131072))
    ACC = 0
    FB = 8
    NB = 5
    def ar(b, n=4):
        return "a[%d:%d]" % (b, b + n - 1)
    for i in range(120):
        a("v_accvgpr_write_b32 a%d, 0" % (ACC + i))
    NK = 32
    def loads(ks):
        b = FB + 44 * (ks % NB)
        L = []
        for f in range(11):
            L.append("buffer_load_dwordx4 %s, v1, s[16:19], s%d offen offset:%d" % (vr(b + 4 * f), 24 + f, (ks % 4) * 1024))
        if ks % 4 == 3:
            for f in range(11):
                L.append("s_add_u32 s%d, s%d, 4096" % (24 + f, 24 + f))
        return L
    for ks in range(NB - 1):
        for ins in loads(ks):
            a(ins)
    for ks in range(NK):
        nxt = ks + NB - 1
        ld = loads(nxt) if nxt < NK else []
        outstanding_after = min(NK - 1, ks + NB - 2) - ks
        a("s_waitcnt vmcnt(%d)" % (11 * outstanding_after))
        if ks in (0, 1, 8, 16, 24):
            stamp(a)
        b = FB + 44 * (ks % NB)
        li = 0
        m = 0
        for j in range(5):
            for i in range(6):
                a("v_mfma_f32_16x16x32_bf16 %s, %s, %s, %s" % (ar(ACC + 4 * (j * 6 + i)), vr(b + 24 + 4 * j), vr(b + 4 * i), ar(ACC + 4 * (j * 6 + i))))
                m += 1
                if li < len(ld) and m >= 2:
                    a(ld[li]); li += 1
        while li < len(ld):
            a(ld[li]); li += 1
    stamp(a)
    a("s_nop 15")
    a("s_mul_i32 s36, s6, 30720")
    a("v_add_u32 v2, s36, v1")
    for tl in range(30):
        a("ds_write_b128 v2, %s offset:%d" % (ar(ACC + 4 * tl), tl * 1024))
    a("s_lshl_b32 s36, s6, 10")
    a("v_add_u32 v2, s36, v1")
    a("v_add_u32 v5, 61440, v2")
    a("v_and_b32 v3, 15, v0")
    a("v_mul_u32_u24 v3, 2560, v3")
    a("v_lshrrev_b32 v4, 4, v0")
    a("v_lshl_add_u32 v3, v4, 3, v3")
    a("s_mul_i32 s37, s4, %d" % (96 * 2560))
    a("s_mul_i32 s38, s3, 1280")
    a("s_add_u32 s37, s37, s38")
    a("s_mul_i32 s38, s5, 160")
    a("s_add_u32 s37, s37, s38")
    a("s_waitcnt lgkmcnt(0)")
    a("s_barrier")
    stamp(a)
    for n in range(8):
        if n == 7:
            a("s_cmp_ge_u32 s6, 2")
            a("s_cbranch_scc1 L_k2_fin")
        for src_ in range(4):
            a("ds_read_b128 %s, v%d offset:%d" % (vr(FB + 16 * (n % 2) + 4 * src_), 2 if src_ < 2 else 5, (src_ % 2) * 30720 + n * 4096))
        a("s_add_u32 s39, s6, %d" % (4 * n))
        a("s_mul_i32 s40, s39, 43")
        a("s_lshr_b32 s40, s40, 8")
        a("s_mul_i32 s41, s40, 6")
        a("s_sub_u32 s41, s39, s41")
        a("s_mul_i32 s41, s41, %d" % (16 * 2560))
        a("s_lshl_b32 s40, s40, 5")
        a("s_add_u32 s41, s41, s40")
        a("s_add_u32 s41, s41, s37")
        a("s_waitcnt lgkmcnt(0)")
        b = FB + 16 * (n % 2)
        for r in range(4):
            a("v_add_f32 v%d, v%d, v%d" % (b + r, b + r, b + 4 + r))
            a("v_add_f32 v%d, v%d, v%d" % (b + 8 + r, b + 8 + r, b + 12 + r))
        for r in range(4):
            a("v_add_f32 v%d, v%d, v%d" % (b + r, b + r, b + 8 + r))
        a("v_cvt_pk_bf16_f32 v%d, v%d, v%d" % (b + 4, b, b + 1))
        a("v_cvt_pk_bf16_f32 v%d, v%d, v%d" % (b + 5, b + 2, b + 3))
        a("buffer_store_dwordx2 %s, v3, s[12:15], s41 offen" % vr(b + 4, 2))
    a.lab("L_k2_fin")
    stamp(a)
    stamp_dump(a, 6, "k2")
    a.lab("L_k2_end")
    a("s_endpgm")

def gen_stream(a):
    a.lab("stream_kernel")
    a("s_cmp_ge_u32 s2, 256")
    a("s_cbranch_scc1 L_st_end")
    a("s_lshr_b32 s3, s2, 7")
    a("s_and_b32 s4, s2, 127")
    a("s_mul_i32 s5, s3, 40")
    a("s_add_u32 s6, s0, s5")
    a("s_addc_u32 s7, s1, 0")
    a("s_load_dwordx4 s[8:11], s[6:7], 8")
    a("s_waitcnt lgkmcnt(0)")
    srd(a, 16, 8, SZ_KV)
    srd(a, 20, 10, SZ_KV)
    a("v_lshlrev_b32 v1, 4, v0")
    a("s_lshl_b32 s12, s4, 18")
    for i in range(16):
        a("buffer_load_dwordx4 %s, v1, s[16:19], s12 offen" % vr(4 + 8 * (i % 8)))
        a("buffer_load_dwordx4 %s, v1, s[20:23], s12 offen" % vr(8 + 8 * (i % 8)))
        a("s_add_u32 s12, s12, 16384")
    a("s_waitcnt vmcnt(0)")
    a.lab("L_st_end")
    a("s_endpgm")

def kd(a, name, vgpr, sgpr=102, acc=None):
    a.L.append(".p2align 6")
    a.L.append(".amdhsa_kernel %s" % name)
    a.L.append("  .amdhsa_next_free_vgpr %d" % vgpr)
    a.L.append("  .amdhsa_next_free_sgpr %d" % sgpr)
    a.L.append("  .amdhsa_accum_offset %d" % (acc if acc else (vgpr + 3) // 4 * 4))
    a.L.append("  .amdhsa_group_segment_fixed_size 0")
    a.L.append("  .amdhsa_kernarg_size 104")
    a.L.append("  .amdhsa_user_sgpr_count 2")
    a.L.append("  .amdhsa_user_sgpr_kernarg_segment_ptr 1")
    a.L.append("  .amdhsa_system_sgpr_workgroup_id_x 1")
    a.L.append(".end_amdhsa_kernel")

def main():
    hdr = open("cdna_kernels/%s.s.ref" % NAME).read().split("; Override launch geometry")[0]
    a = A()
    a.L.append(hdr.rstrip("\n"))
    if "--stream" in sys.argv:
        a.L.append("; @launch kernel=stream_kernel grid=(256,1,1) block=(1024,1,1) lds=0")
    a.L.append("; @launch kernel=attn_kernel grid=(256,1,1) block=(768,1,1) lds=%d" % LDS1)
    a.L.append("; @launch kernel=oproj_kernel grid=(256,1,1) block=(256,1,1) lds=122880")
    a.L.append('.amdgcn_target "amdgcn-amd-amdhsa--gfx950"')
    a.L.append(".text")
    for nm, g in (("wprep_kernel", gen_k0), ("attn_kernel", gen_k1), ("oproj_kernel", gen_k2), ("stream_kernel", gen_stream)):
        a.L.append(".globl %s" % nm)
        a.L.append(".p2align 8")
        a.L.append(".type %s,@function" % nm)
        g(a)
    a.L.append('.section .rodata,"a"')
    kd(a, "wprep_kernel", 48)
    kd(a, "stream_kernel", 72)
    kd(a, "attn_kernel", 168)
    kd(a, "oproj_kernel", 228 + 120, acc=228)
    args = [x for x in sys.argv[1:] if not x.startswith("--")]
    out = args[0] if args else "cdna_kernels/%s.s" % NAME
    open(out, "w").write(a.text())

main()
```

```python
import sys

NAME = "concat_heads__gqa_block_cached__mha_block_cached__near_ridge"

class A:
    def __init__(self):
        self.L = []
    def __call__(self, s):
        self.L.append("    " + s)
    def lab(self, s):
        self.L.append(s + ":")
    def c(self, s):
        self.L.append("    ; " + s)
    def text(self):
        return "\n".join(self.L) + "\n"

def vr(b, n=4):
    return "v[%d:%d]" % (b, b + n - 1)
def sr(b, n=4):
    return "s[%d:%d]" % (b, b + n - 1)

WS_OF = 0
OF_BYTES = 2 * 96 * 128 * 1024
WS_WF = OF_BYTES
WF_BYTES = 2 * 40 * 128 * 1024
WS_BYTES = 268435456

SZ_X = 8 * 192 * 640 * 2
SZ_KV = 8 * 32 * 512 * 128 * 2
SZ_W = 640 * 4096 * 2
SZ_OUT = 8 * 192 * 1280 * 2

def srd(a, d, base, size):
    a("s_mov_b32 s%d, s%d" % (d, base))
    a("s_and_b32 s%d, s%d, 0xffff" % (d + 1, base + 1))
    a("s_mov_b32 s%d, 0x%x" % (d + 2, size))
    a("s_mov_b32 s%d, 0x00020000" % (d + 3))

def gen_k0(a):
    a.lab("wprep_kernel")
    a("s_cmp_ge_u32 s2, 256")
    a("s_cbranch_scc1 L_k0_end")
    a("s_lshr_b32 s3, s2, 7")
    a("s_and_b32 s4, s2, 127")
    a("s_mul_i32 s5, s3, 40")
    a("s_add_u32 s6, s0, s5")
    a("s_addc_u32 s7, s1, 0")
    a("s_load_dwordx2 s[8:9], s[6:7], 32")
    a("s_load_dwordx2 s[10:11], s[0:1], 96")
    a("v_lshrrev_b32 v1, 6, v0")
    a("v_and_b32 v0, 63, v0")
    a("s_nop 0")
    a("v_readfirstlane_b32 s12, v1")
    a("s_waitcnt lgkmcnt(0)")
    srd(a, 16, 8, SZ_W)
    srd(a, 20, 10, WS_BYTES)
    a("v_lshrrev_b32 v1, 4, v0")
    a("v_and_b32 v2, 15, v0")
    a("v_mul_u32_u24 v1, 5120, v1")
    a("v_lshl_add_u32 v1, v2, 4, v1")
    a("s_mul_i32 s13, s4, 40960")
    a("s_lshl_b32 s14, s12, 8")
    a("s_add_u32 s13, s13, s14")
    a("s_mul_i32 s15, s12, 8704")
    for P in range(8):
        a("s_add_u32 s24, s13, %d" % ((16 * (P // 4) + P % 4) * 1280))
        a("s_add_u32 m0, s15, %d" % (P * 1088))
        a("s_nop 0")
        a("buffer_load_dwordx4 v1, s[16:19], s24 offen lds")
    a("v_lshrrev_b32 v3, 5, v0")
    a("v_bfe_u32 v4, v0, 4, 1")
    a("v_bfe_u32 v5, v0, 2, 2")
    a("v_and_b32 v6, 3, v0")
    a("v_lshl_add_u32 v3, v3, 2, v5")
    a("v_mul_u32_u24 v3, 1088, v3")
    a("v_lshl_add_u32 v3, v4, 8, v3")
    a("v_lshl_add_u32 v3, v6, 3, v3")
    a("v_add_u32 v3, s15, v3")
    a("s_mul_i32 s25, s3, 40")
    a("s_lshl_b32 s26, s12, 3")
    a("s_add_u32 s25, s25, s26")
    a("s_lshl_b32 s25, s25, 7")
    a("s_add_u32 s25, s25, s4")
    a("s_lshl_b32 s25, s25, 10")
    a("s_add_u32 s25, s25, 0x%x" % WS_WF)
    a("v_lshlrev_b32 v7, 4, v0")
    a("s_waitcnt vmcnt(0)")
    for nt in range(8):
        a("ds_read_b64_tr_b16 %s, v3 offset:%d" % (vr(8 + 4 * nt, 2), nt * 32))
        a("ds_read_b64_tr_b16 %s, v3 offset:%d" % (vr(10 + 4 * nt, 2), nt * 32 + 512))
    a("s_waitcnt lgkmcnt(0)")
    for nt in range(8):
        a("buffer_store_dwordx4 %s, v7, s[20:23], s25 offen" % vr(8 + 4 * nt))
        a("s_add_u32 s25, s25, 0x%x" % (128 * 1024))
    a.lab("L_k0_end")
    a("s_endpgm")

SLOT = 34816
QPB = 29696
QP0 = SLOT
LDS1 = 160 * 1024
V_ACC = 0
V_Q = 64
V_S = 96
V_NM = 112
V_KV = 128
V_KA0, V_KA1, V_VA, V_DK, V_L, V_T0, V_T1, V_T2 = 160, 161, 162, 163, 164, 165, 166, 167
V_FS = [64, 104]
V_XA0, V_XA1, V_WA, V_DQ = 144, 145, 146, 147
S_BLK, S_B, S_HP, S_W, S_HSEL, S_QT = 3, 4, 5, 6, 7, 44
S_X, S_K, S_V, S_WQ, S_WS = 20, 24, 28, 32, 40
S_D1, S_D2 = 48, 52
S_G1, S_G1S, S_G1A, S_L1, S_L1S = 56, 57, 58, 59, 60
S_G2, S_G2S, S_L2 = 61, 62, 63
S_T0, S_T1, S_T2, S_T3 = 64, 65, 66, 67
S_ROLE = 68
S_SC = 70

STAMPS = "--stamps" in sys.argv
_stamp_n = [0]
def stamp(a):
    if not STAMPS:
        return
    n = _stamp_n[0]; _stamp_n[0] += 1
    a("%s s[%d:%d]" % ("s_memrealtime" if "--rt" in sys.argv else "s_memtime", 72 + 2 * n, 73 + 2 * n))

def stamp_dump(a, S_W=6, tag="k1"):
    if not STAMPS:
        return
    n = _stamp_n[0]
    _stamp_n[0] = 0
    a("s_waitcnt lgkmcnt(0)")
    a("s_cmp_lg_u32 s2, 0")
    a("s_cbranch_scc1 L_sd_e_%s" % tag)
    if tag == "k1":
        a("s_and_b32 s64, s%d, 3" % S_W)
        a("s_cmp_lg_u32 s64, 0")
        a("s_cbranch_scc1 L_sd_e_%s" % tag)
    a("s_load_dwordx2 s[10:11], s[0:1], 88")
    a("s_waitcnt lgkmcnt(0)")
    srd(a, 12, 10, 256)
    a("s_lshl_b32 s64, s%d, %d" % (S_W, 4 if tag == "k1" else 6))
    a("v_mov_b32 v1, 0")
    for i in range(n):
        a("s_sub_u32 s65, s%d, s72" % (72 + 2 * i))
        a("v_mov_b32 v2, s65")
        a("buffer_store_dword v2, v1, s[12:15], s64 offen offset:%d" % (4 * i))
    a.lab("L_sd_e_%s" % tag)

TOUCH_STRIDE = 128
NTOUCH = 8
for x in sys.argv:
    if x.startswith("--touch="):
        TOUCH_STRIDE = int(x.split("=")[1])
    if x.startswith("--ntouch="):
        NTOUCH = int(x.split("=")[1])
TPACE = 1
NPRE = 2
PRIO = None
for x in sys.argv:
    if x.startswith("--prio="):
        PRIO = [int(c) for c in x.split("=")[1]]
for x in sys.argv:
    if x.startswith("--tpace="):
        TPACE = int(x.split("=")[1])
    if x.startswith("--npre="):
        NPRE = int(x.split("=")[1])
V_DW, V_WR, V_WST, V_TCH, V_WD = 148, 149, 150, 151, 152
S_WO = 36
S_WG, S_WL, S_WSO = 47, 45, 46
WTAIL = 153600

def gen_k1(a):
    a.lab("attn_kernel")
    a("s_cmp_ge_u32 s2, 256")
    a("s_cbranch_scc1 L_k1_end")
    stamp(a)
    a("s_bfe_u32 s%d, s2, 0x10002" % S_BLK)
    a("s_lshr_b32 s%d, s2, 5" % S_B)
    a("s_and_b32 s%d, s2, 3" % S_HP)
    a("s_lshl_b32 s%d, s%d, 2" % (S_HP, S_HP))
    a("s_bfe_u32 s%d, s2, 0x20003" % S_T0)
    a("s_add_u32 s%d, s%d, s%d" % (S_HP, S_HP, S_T0))
    a("s_mul_i32 s%d, s%d, 40" % (S_T0, S_BLK))
    a("s_add_u32 s8, s0, s%d" % S_T0)
    a("s_addc_u32 s9, s1, 0")
    a("s_load_dwordx8 s[12:19], s[8:9], 0")
    a("s_load_dwordx2 s[10:11], s[0:1], 96")
    a("s_lshr_b32 s%d, s2, 7" % S_T1)
    a("s_mul_i32 s%d, s%d, 40" % (S_T0, S_T1))
    a("s_add_u32 s8, s0, s%d" % S_T0)
    a("s_addc_u32 s9, s1, 0")
    a("s_load_dwordx2 s[46:47], s[8:9], 32")
    a("v_lshrrev_b32 v1, 6, v0")
    a("v_and_b32 v0, 63, v0")
    a("s_nop 0")
    a("v_readfirstlane_b32 s%d, v1" % S_W)
    a("s_nop 3")
    a("s_cmp_ge_u32 s%d, 6" % S_W)
    a("s_cselect_b32 s%d, 1, 0" % S_HSEL)
    a("s_mul_i32 s%d, s%d, 6" % (S_T0, S_HSEL))
    a("s_sub_u32 s%d, s%d, s%d" % (S_QT, S_W, S_T0))
    a("s_lshr_b32 s%d, s%d, 2" % (S_ROLE, S_W))
    a("s_mov_b32 s%d, 0x3e0293ee" % S_SC)
    a("s_mov_b32 s%d, 0x3e0293ee" % (S_SC + 1))
    a("s_waitcnt lgkmcnt(0)")
    srd(a, S_X, 12, SZ_X)
    srd(a, S_K, 14, SZ_KV)
    srd(a, S_V, 16, SZ_KV)
    srd(a, S_WQ, 18, SZ_W)
    srd(a, S_WS, 10, WS_BYTES)
    srd(a, S_WO, 46, SZ_W)
    a("v_and_b32 v1, 31, v0")
    a("v_lshrrev_b32 v2, 5, v0")
    a("v_bfe_u32 v3, v0, 4, 1")
    a("v_bfe_u32 v4, v0, 2, 2")
    a("v_and_b32 v5, 3, v0")
    a("s_cmp_eq_u32 s%d, 0" % S_ROLE)
    for i in range(3):
        a("s_cselect_b32 s%d, s%d, s%d" % (S_D1 + i, S_X + i, S_WQ + i))
    a("s_mov_b32 s%d, 0x00020000" % (S_D1 + 3))
    a("s_mov_b32 s%d, 8192" % S_T0)
    a("s_cselect_b32 s%d, 20480, s%d" % (S_G1S, S_T0))
    a("s_cselect_b32 s%d, 64, 262144" % S_G1A)
    a("s_mov_b32 s%d, 1088" % S_T0)
    a("s_cselect_b32 s%d, 1024, s%d" % (S_L1S, S_T0))
    a("s_mul_i32 s%d, s%d, 192" % (S_T0, S_B))
    a("s_mul_i32 s%d, s%d, 48" % (S_T1, S_W))
    a("s_add_u32 s%d, s%d, s%d" % (S_T0, S_T0, S_T1))
    a("s_mul_i32 s%d, s%d, 1280" % (S_T0, S_T0))
    a("s_mul_i32 s%d, s%d, 3072" % (S_T1, S_W))
    a("s_add_u32 s%d, s%d, %d" % (S_T1, S_T1, QP0))
    a("s_sub_u32 s%d, s%d, 4" % (S_T2, S_W))
    a("s_lshl_b32 s%d, s%d, 16" % (S_T3, S_T2))
    a("s_lshl_b32 s98, s%d, 9" % S_HP)
    a("s_add_u32 s%d, s%d, s98" % (S_T3, S_T3))
    a("s_mul_i32 s%d, s%d, 4352" % (S_T2, S_T2))
    a("s_add_u32 s%d, s%d, %d" % (S_T2, S_T2, QP0 + 12288))
    a("s_cmp_eq_u32 s%d, 0" % S_ROLE)
    a("s_cselect_b32 s%d, s%d, s%d" % (S_G1, S_T0, S_T3))
    a("s_cselect_b32 s%d, s%d, s%d" % (S_L1, S_T1, S_T2))
    a("v_lshrrev_b32 v6, 2, v0")
    a("v_bfe_u32 v7, v0, 4, 2")
    a("v_xor_b32 v7, v5, v7")
    a("v_mul_u32_u24 v6, 1280, v6")
    a("v_lshl_add_u32 v6, v7, 4, v6")
    a("v_lshlrev_b32 v7, 15, v2")
    a("v_lshl_add_u32 v7, v1, 4, v7")
    a("s_cselect_b64 vcc, -1, 0")
    a("v_cndmask_b32 v%d, v7, v6, vcc" % V_DQ)
    a("s_sub_u32 s%d, s%d, 8" % (S_T0, S_W))
    a("s_and_b32 s%d, s%d, 1" % (S_T1, S_T0))
    a("s_lshl_b32 s%d, s%d, 5" % (S_T2, S_B))
    a("s_lshl_b32 s%d, s%d, 1" % (S_T3, S_HP))
    a("s_add_u32 s%d, s%d, s%d" % (S_T2, S_T2, S_T3))
    a("s_add_u32 s%d, s%d, s%d" % (S_T2, S_T2, S_T1))
    a("s_lshl_b32 s%d, s%d, 17" % (S_G2, S_T2))
    a("s_mul_i32 s%d, s%d, 8704" % (S_L2, S_T0))
    a("s_and_b32 s%d, s2, 127" % S_T1)
    a("s_mul_i32 s%d, s%d, 40960" % (S_WG, S_T1))
    a("s_lshl_b32 s%d, s%d, 8" % (S_T2, S_T0))
    a("s_add_u32 s%d, s%d, s%d" % (S_WG, S_WG, S_T2))
    a("s_lshr_b32 s%d, s2, 7" % S_T2)
    a("s_mul_i32 s%d, s%d, 40" % (S_T2, S_T2))
    a("s_lshl_b32 s%d, s%d, 3" % (S_T3, S_T0))
    a("s_add_u32 s%d, s%d, s%d" % (S_T2, S_T2, S_T3))
    a("s_lshl_b32 s%d, s%d, 7" % (S_T2, S_T2))
    a("s_add_u32 s%d, s%d, s%d" % (S_T2, S_T2, S_T1))
    a("s_lshl_b32 s%d, s%d, 10" % (S_T2, S_T2))
    a("s_add_u32 s%d, s%d, 0x%x" % (S_WSO, S_T2, WS_WF))
    a("s_cmp_lt_u32 s%d, 10" % S_W)
    for i in range(3):
        a("s_cselect_b32 s%d, s%d, s%d" % (S_D2 + i, S_K + i, S_V + i))
    a("s_mov_b32 s%d, 0x00020000" % (S_D2 + 3))
    a("v_lshrrev_b32 v6, 4, v0")
    a("v_and_b32 v7, 15, v0")
    a("v_xor_b32 v8, v7, v6")
    a("v_lshlrev_b32 v8, 4, v8")
    a("v_lshl_add_u32 v8, v6, 8, v8")
    a("v_lshlrev_b32 v7, 4, v7")
    a("v_mul_u32_u24 v9, 5120, v6")
    a("v_add_u32 v%d, v9, v7" % V_DW)
    a("v_lshl_add_u32 v7, v6, 10, v7")
    a("s_cselect_b64 vcc, -1, 0")
    a("v_cndmask_b32 v%d, v7, v8, vcc" % V_DK)
    a("v_mul_u32_u24 v%d, %d, v0" % (V_TCH, TOUCH_STRIDE))

    r2 = []
    def r2_wait_n(tag):
        idx = max(i for i, t in enumerate(r2) if t == tag)
        return len(r2) - 1 - idx

    def qp_dma(stage):
        buf = stage % 4
        lab = "L_qd_%d" % stage
        a("s_cmp_ge_u32 s%d, 2" % S_ROLE)
        a("s_cbranch_scc1 %s_e" % lab)
        a("s_mov_b32 s%d, s%d" % (S_T0, S_G1))
        a("s_add_u32 s%d, s%d, %d" % (S_T1, S_L1, buf * QPB))
        for k in range(4):
            if k == 3:
                a("s_cmp_eq_u32 s%d, 0" % S_ROLE)
                a("s_cbranch_scc1 %s_x" % lab)
            a("s_mov_b32 m0, s%d" % S_T1)
            a("s_nop 0")
            a("buffer_load_dwordx4 v%d, %s, s%d offen lds" % (V_DQ, sr(S_D1), S_T0))
            if k < 3:
                a("s_add_u32 s%d, s%d, s%d" % (S_T0, S_T0, S_G1S))
                a("s_add_u32 s%d, s%d, s%d" % (S_T1, S_T1, S_L1S))
        a.lab(lab + "_x")
        a("s_add_u32 s%d, s%d, s%d" % (S_G1, S_G1, S_G1A))
        a.lab(lab + "_e")

    def r2_begin(tag):
        a("s_cmp_lt_u32 s%d, 2" % S_ROLE)
        a("s_cbranch_scc1 L_r2_%s" % tag)
    def r2_end(tag):
        a.lab("L_r2_%s" % tag)

    def kv_dma(stage, tag):
        slot = stage % 4
        lab = "L_kd_%s" % tag
        r2_begin(lab)
        a("s_cmp_lt_u32 s%d, 10" % S_W)
        a("s_cbranch_scc0 %s_v" % lab)
        for P in range(8):
            a("s_add_u32 s%d, s%d, %d" % (S_T0, S_G2, stage * 8192 + P * 1024))
            a("s_add_u32 m0, s%d, %d" % (S_L2, slot * SLOT + P * 1088))
            a("s_nop 0")
            a("buffer_load_dwordx4 v%d, %s, s%d offen lds" % (V_DK, sr(S_D2), S_T0))
        a("s_branch L_r2_%s" % lab)
        a.lab(lab + "_v")
        for P in range(8):
            a("s_add_u32 s%d, s%d, %d" % (S_T0, S_G2, stage * 8192 + (16 * (P // 4) + P % 4) * 256))
            a("s_add_u32 m0, s%d, %d" % (S_L2, slot * SLOT + P * 1088))
            a("s_nop 0")
            a("buffer_load_dwordx4 v%d, %s, s%d offen lds" % (V_DK, sr(S_D2), S_T0))
        r2_end(lab)
        r2.extend(["kv%d" % stage] * 8)

    def touch(stage, tag):
        n = 8192 // (64 * TOUCH_STRIDE)
        r2_begin("t" + tag)
        for k in range(n):
            a("s_add_u32 s%d, s%d, %d" % (S_T0, S_G2, stage * 8192 + k * 64 * TOUCH_STRIDE))
            a("buffer_load_dword v%d, v%d, %s, s%d offen" % (V_T0, V_TCH, sr(S_D2), S_T0))
            r2.append("touch")
        r2_end("t" + tag)

    def wo_dma(tile4):
        for P in range(8):
            if tile4:
                a("s_add_u32 s%d, s%d, %d" % (S_T0, S_WG, 1024 + (16 * (P // 4) + P % 4) * 1280))
                a("s_mov_b32 m0, %d" % (WTAIL + P * 1088))
            else:
                a("s_add_u32 s%d, s%d, %d" % (S_T0, S_WG, (16 * (P // 4) + P % 4) * 1280))
                a("s_add_u32 m0, s%d, %d" % (S_L2, P * 1088))
            a("s_nop 0")
            a("buffer_load_dwordx4 v%d, %s, s%d offen lds" % (V_DW, sr(S_WO), S_T0))

    def wo_batch(bi, tile4):
        for q in range(2):
            nt = 2 * bi + q
            base = WTAIL if tile4 else 0
            a("ds_read_b64_tr_b16 %s, v%d offset:%d" % (vr(V_WD + 4 * q, 2), V_WR + (1 if tile4 else 0) * 0, nt * 32))
            a("ds_read_b64_tr_b16 %s, v%d offset:%d" % (vr(V_WD + 4 * q + 2, 2), V_WR, nt * 32 + 512))
        a("s_waitcnt lgkmcnt(0)")
        for q in range(2):
            nt = 2 * bi + q
            a("s_add_u32 s%d, s%d, %d" % (S_T0, S_WSO, (nt + (32 if tile4 else 0)) * 131072))
            a("buffer_store_dwordx4 %s, v%d, %s, s%d offen" % (vr(V_WD + 4 * q), V_WST, sr(S_WS), S_T0))

    def role_wait(tag, n0, n1, n2):
        lab = "L_rw_%s" % tag
        vals = [n0, n1, n2]
        for r in range(3):
            if vals[r] is None:
                continue
            a("s_cmp_lg_u32 s%d, %d" % (S_ROLE, r))
            a("s_cbranch_scc1 %s_%d" % (lab, r))
            a("s_waitcnt vmcnt(%d)" % vals[r])
            a.lab("%s_%d" % (lab, r))

    for st in range(3):
        qp_dma(st)
    r2_begin("wo")
    a("s_cmp_lg_u32 s%d, 8" % S_W)
    a("s_cbranch_scc1 L_wo4_skip")
    wo_dma(True)
    a.lab("L_wo4_skip")
    wo_dma(False)
    r2_end("wo")
    r2.extend(["wo"] * 8)
    tq = list(range(NTOUCH))
    for i in range(NPRE):
        if tq: touch(tq.pop(0), "p%d" % i)
    a("s_lshl_b32 s%d, s%d, 5" % (S_T0, S_QT))
    a("v_add_u32 v6, s%d, v1" % S_T0)
    a("v_bfe_u32 v7, v6, 2, 2")
    a("v_xor_b32 v8, v2, v7")
    a("v_lshlrev_b32 v6, 6, v6")
    a("v_lshl_add_u32 v%d, v8, 4, v6" % V_XA0)
    a("v_xor_b32 v8, 2, v8")
    a("v_lshl_add_u32 v%d, v8, 4, v6" % V_XA1)
    a("v_add_u32 v%d, %d, v%d" % (V_XA0, QP0, V_XA0))
    a("v_add_u32 v%d, %d, v%d" % (V_XA1, QP0, V_XA1))
    a("v_lshl_add_u32 v6, v2, 2, v4")
    a("v_mul_u32_u24 v6, 1088, v6")
    a("v_lshl_add_u32 v6, v3, 5, v6")
    a("v_and_b32 v7, 1, v5")
    a("v_lshl_add_u32 v6, v7, 4, v6")
    a("v_lshrrev_b32 v7, 1, v5")
    a("v_lshl_add_u32 v6, v7, 3, v6")
    a("s_lshl_b32 s%d, s%d, 8" % (S_T0, S_HSEL))
    a("s_add_u32 s%d, s%d, %d" % (S_T0, S_T0, QP0 + 12288))
    a("v_add_u32 v%d, s%d, v6" % (V_WA, S_T0))
    a("v_lshrrev_b32 v6, 2, v1")
    a("v_mul_u32_u24 v6, 1088, v6")
    a("v_and_b32 v7, 3, v1")
    a("v_lshl_add_u32 v6, v7, 8, v6")
    a("v_xor_b32 v8, v2, v7")
    a("s_mul_i32 s%d, s%d, 8704" % (S_T0, S_HSEL))
    a("v_add_u32 v6, s%d, v6" % S_T0)
    a("v_lshl_add_u32 v%d, v8, 4, v6" % V_KA0)
    a("v_xor_b32 v8, 2, v8")
    a("v_lshl_add_u32 v%d, v8, 4, v6" % V_KA1)
    a("v_mul_u32_u24 v6, 1088, v4")
    a("v_lshl_add_u32 v6, v2, 8, v6")
    a("v_lshl_add_u32 v6, v3, 5, v6")
    a("v_lshl_add_u32 v6, v5, 3, v6")
    a("s_add_u32 s%d, s%d, 17408" % (S_T0, S_T0))
    a("v_add_u32 v%d, s%d, v6" % (V_VA, S_T0))
    a("v_lshl_add_u32 v6, v2, 2, v4")
    a("v_mul_u32_u24 v6, 1088, v6")
    a("v_lshl_add_u32 v6, v3, 8, v6")
    a("v_lshl_add_u32 v6, v5, 3, v6")
    a("v_add_u32 v%d, s%d, v6" % (V_WR, S_L2))
    a("v_lshlrev_b32 v%d, 4, v0" % V_WST)
    a("v_mov_b32 v%d, v0" % V_T2)

    def qp_reads(stage, fs):
        base = V_FS[fs]
        L = []
        for ks in range(2):
            L.append("ds_read_b128 %s, v%d" % (vr(base + 4 * ks), V_XA0 + ks))
            for t in range(4):
                d = base + 8 + (ks * 4 + t) * 4
                for u in range(2):
                    L.append("ds_read_b64_tr_b16 %s, v%d offset:%d" % (vr(d + 2 * u, 2), V_WA, ks * 8704 + u * 512 + t * 64))
        return L

    def qp_addr_adv(stage_from):
        d = QPB if (stage_from % 4) != 3 else -3 * QPB
        for r in (V_XA0, V_XA1, V_WA):
            if d > 0:
                a("v_add_u32 v%d, %d, v%d" % (r, d, r))
            else:
                a("v_subrev_u32 v%d, %d, v%d" % (r, -d, r))

    role_wait("pre", 6, 8, None)
    a("s_barrier")
    stamp(a)
    for ins in qp_reads(0, 0):
        a(ins)
    qp_addr_adv(0)
    NQ = 20
    WO_IT = 6
    for j in range(NQ):
        a.c("---- qproj iter %d" % j)
        if j in (5, 10, 15):
            stamp(a)
        if j + 1 <= NQ - 1:
            rem = 1 if j + 2 <= NQ - 1 else 0
            role_wait("q%d" % j, 3 * rem, 4 * rem, None)
        a("s_barrier")
        if j + 3 < NQ:
            qp_dma(j + 3)
        if tq and j % TPACE == 0:
            touch(tq.pop(0), "q%d" % j)
        if WO_IT <= j < WO_IT + 4:
            r2_begin("wb%d" % j)
            if j == WO_IT:
                a("s_waitcnt vmcnt(%d)" % r2_wait_n("wo"))
            wo_batch(j - WO_IT, False)
            r2_end("wb%d" % j)
            r2.extend(["wst"] * 2)
        if j == WO_IT + 4:
            kv_dma(0, "q%d" % j)
            a("s_cmp_lg_u32 s%d, 8" % S_W)
            a("s_cbranch_scc1 L_wo4b_skip")
            a("v_subrev_u32 v%d, s%d, v%d" % (V_WR, S_L2, V_WR))
            a("v_add_u32 v%d, %d, v%d" % (V_WR, WTAIL, V_WR))
            for bi in range(4):
                wo_batch(bi, True)
            a.lab("L_wo4b_skip")
        if j >= 18:
            kv_dma(j - 17, "q%d" % j)
        a("s_waitcnt lgkmcnt(0)")
        fs = j & 1
        base = V_FS[fs]
        rd = qp_reads(j + 1, fs ^ 1) if j + 1 < NQ else []
        mf = []
        for ks in range(2):
            for t in range(4):
                c = "0" if (j == 0 and ks == 0) else vr(V_ACC + 16 * t, 16)
                mf.append("v_mfma_f32_32x32x16_bf16 %s, %s, %s, %s" % (
                    vr(V_ACC + 16 * t, 16), vr(base + 8 + (ks * 4 + t) * 4), vr(base + 4 * ks), c))
        ri = 0
        for m in range(8):
            a(mf[m])
            n = 3 if m < 2 else 2
            for _ in range(n):
                if ri < len(rd):
                    a(rd[ri]); ri += 1
        while ri < len(rd):
            a(rd[ri]); ri += 1
        if j + 1 < NQ:
            qp_addr_adv(j + 1)
    a.c("---- q convert")
    stamp(a)
    a("s_barrier")
    kv_dma(3, "a_pre")
    role_wait("a_pre2", None, None, r2_wait_n("kv0"))
    a("s_nop 15")
    for t in range(4):
        for p in range(8):
            i0 = V_ACC + 16 * t + 2 * p
            a("v_pk_mul_f32 %s, %s, %s" % (vr(i0, 2), vr(i0, 2), sr(S_SC, 2)))
            a("v_cvt_pk_bf16_f32 v%d, v%d, v%d" % (V_Q + t * 8 + p, i0, i0 + 1))
    a("v_mov_b32 v%d, 0" % V_L)

    def k_reads(stage):
        L = []
        for s in range(8):
            L.append("ds_read_b128 %s, v%d offset:%d" % (vr(V_KV + 4 * s), V_KA0 + (s & 1), (s >> 1) * 64))
        return L
    def v_reads():
        L = []
        for sl in range(2):
            for dt in range(4):
                f = sl * 4 + dt
                for u in range(2):
                    L.append("ds_read_b64_tr_b16 %s, v%d offset:%d" % (vr(V_KV + 4 * f + 2 * u, 2), V_VA, sl * 4352 + u * 512 + dt * 64))
        return L
    def slot_adv(regs, stage_from):
        d = SLOT if (stage_from % 4) != 3 else -3 * SLOT
        for r in regs:
            if d > 0:
                a("v_add_u32 v%d, %d, v%d" % (r, d, r))
            else:
                a("v_subrev_u32 v%d, %d, v%d" % (r, -d, r))

    a("s_barrier")
    for ins in k_reads(0):
        a(ins)
    slot_adv((V_KA0, V_KA1), 0)
    NT = 16
    rare = []
    for t in range(NT):
        a.c("---- attn stage %d" % t)
        if t in (0, 1, 4, 8, 12):
            stamp(a)
        if t + 1 < NT:
            role_wait("a%d" % t, None, None, r2_wait_n("kv%d" % (t + 1)))
        a("s_barrier")
        if t >= 1 and t + 3 < NT:
            kv_dma(t + 3, "a%d" % t)
        if PRIO: a("s_setprio %d" % PRIO[0])
        a("s_waitcnt lgkmcnt(0)")
        vrd = v_reads()
        S = V_S
        for s in range(8):
            c = ("0" if t == 0 else vr(V_NM, 16)) if s == 0 else vr(S, 16)
            a("v_mfma_f32_32x32x16_bf16 %s, %s, %s, %s" % (vr(S, 16), vr(V_KV + 4 * s), vr(V_Q + 4 * s), c))
            if s >= 1:
                a(vrd[2 * (s - 1)]); a(vrd[2 * (s - 1) + 1])
        a(vrd[14]); a(vrd[15])
        slot_adv((V_VA,), t)
        if PRIO: a("s_setprio %d" % PRIO[1])
        a("s_nop 7")
        a("s_nop 1")
        T0, T1 = V_T0, V_T1
        a("v_max3_f32 v%d, v%d, v%d, v%d" % (T0, S, S + 1, S + 2))
        a("v_max3_f32 v%d, v%d, v%d, v%d" % (T1, S + 3, S + 4, S + 5))
        a("v_max3_f32 v%d, v%d, v%d, v%d" % (T0, T0, S + 6, S + 7))
        a("v_max3_f32 v%d, v%d, v%d, v%d" % (T1, T1, S + 8, S + 9))
        a("v_max3_f32 v%d, v%d, v%d, v%d" % (T0, T0, S + 10, S + 11))
        a("v_max3_f32 v%d, v%d, v%d, v%d" % (T1, T1, S + 12, S + 13))
        a("v_max3_f32 v%d, v%d, v%d, v%d" % (T0, T0, S + 14, S + 15))
        a("v_max_f32 v%d, v%d, v%d" % (T0, T0, T1))
        if t == 0:
            a("v_mov_b32 v%d, v%d" % (T1, T0))
            a("s_nop 1")
            a("v_permlane32_swap_b32 v%d, v%d" % (T0, T1))
            a("s_nop 1")
            a("v_max_f32 v%d, v%d, v%d" % (T0, T0, T1))
            for i in range(16):
                a("v_sub_f32 v%d, v%d, v%d" % (S + i, S + i, T0))
            for i in range(16):
                a("v_sub_f32 v%d, 0, v%d" % (V_NM + i, T0))
        else:
            a("v_cmp_lt_f32 vcc, 0x41000000, v%d" % T0)
            a("s_cbranch_vccnz L_rare_%d" % t)
            a.lab("L_back_%d" % t)
            R = []
            R.append("L_rare_%d:" % t)
            R.append("    v_mov_b32 v%d, v%d" % (T1, T0))
            R.append("    s_nop 1")
            R.append("    v_permlane32_swap_b32 v%d, v%d" % (T0, T1))
            R.append("    s_nop 1")
            R.append("    v_max_f32 v%d, v%d, v%d" % (T0, T0, T1))
            R.append("    v_max_f32 v%d, 0, v%d" % (T0, T0))
            R.append("    v_exp_f32 v%d, -v%d" % (T1, T0))
            for i in range(16):
                R.append("    v_sub_f32 v%d, v%d, v%d" % (S + i, S + i, T0))
            for i in range(16):
                R.append("    v_sub_f32 v%d, v%d, v%d" % (V_NM + i, V_NM + i, T0))
            for i in range(64):
                R.append("    v_mul_f32 v%d, v%d, v%d" % (V_ACC + i, V_ACC + i, T1))
            R.append("    v_mul_f32 v%d, v%d, v%d" % (V_L, V_L, T1))
            R.append("    s_nop 1")
            R.append("    s_branch L_back_%d" % t)
            rare += R
        for i in range(16):
            a("v_exp_f32 v%d, v%d" % (S + i, S + i))
        for i in range(16):
            a("v_add_f32 v%d, v%d, v%d" % (V_L, V_L, S + i))
        for p in range(4):
            a("v_cvt_pk_bf16_f32 v%d, v%d, v%d" % (S + p, S + 2 * p, S + 2 * p + 1))
        for p in range(4):
            a("v_cvt_pk_bf16_f32 v%d, v%d, v%d" % (S + 8 + p, S + 8 + 2 * p, S + 8 + 2 * p + 1))
        if PRIO: a("s_setprio %d" % PRIO[2])
        a("s_waitcnt lgkmcnt(0)")
        krd = k_reads(t + 1) if t + 1 < NT else []
        for f in range(8):
            sl, dt = f // 4, f % 4
            c = "0" if (t == 0 and sl == 0) else vr(V_ACC + 16 * dt, 16)
            a("v_mfma_f32_32x32x16_bf16 %s, %s, %s, %s" % (vr(V_ACC + 16 * dt, 16), vr(V_KV + 4 * f), vr(S + 8 * sl), c))
            if f >= 1 and krd:
                a(krd[f - 1])
        if krd:
            a(krd[7])
            slot_adv((V_KA0, V_KA1), t + 1)
    a.c("---- epilogue")
    stamp(a)
    T0, T1 = V_T0, V_T1
    a("v_mov_b32 v%d, v%d" % (T1, V_L))
    a("s_nop 1")
    a("v_permlane32_swap_b32 v%d, v%d" % (V_L, T1))
    a("s_nop 1")
    a("v_add_f32 v%d, v%d, v%d" % (V_L, V_L, T1))
    a("v_rcp_f32 v%d, v%d" % (V_L, V_L))
    a("s_mul_i32 s%d, s%d, 96" % (S_T0, S_BLK))
    a("s_mul_i32 s%d, s%d, 12" % (S_T1, S_B))
    a("s_add_u32 s%d, s%d, s%d" % (S_T0, S_T0, S_T1))
    a("s_lshl_b32 s%d, s%d, 1" % (S_T1, S_QT))
    a("s_add_u32 s%d, s%d, s%d" % (S_T0, S_T0, S_T1))
    a("s_lshl_b32 s%d, s%d, 7" % (S_T0, S_T0))
    a("s_lshl_b32 s%d, s%d, 1" % (S_T1, S_HP))
    a("s_add_u32 s%d, s%d, s%d" % (S_T1, S_T1, S_HSEL))
    a("s_lshl_b32 s%d, s%d, 2" % (S_T1, S_T1))
    a("s_add_u32 s%d, s%d, s%d" % (S_T0, S_T0, S_T1))
    a("s_lshl_b32 s%d, s%d, 10" % (S_T0, S_T0))
    ln = V_T2
    a("v_and_b32 v%d, 15, v%d" % (T0, ln))
    a("v_bfe_u32 v%d, v%d, 4, 1" % (T1, ln))
    a("v_lshlrev_b32 v%d, 17, v%d" % (T1, T1))
    a("v_lshl_add_u32 v%d, v%d, 4, v%d" % (T0, T0, T1))
    a("v_lshrrev_b32 v%d, 5, v%d" % (T1, ln))
    a("v_lshl_add_u32 v%d, v%d, 8, v%d" % (T0, T1, T0))
    a("s_nop 7")
    for dt in range(4):
        for half in range(2):
            b0 = V_ACC + 16 * dt + 8 * half
            d = V_Q + (dt * 2 + half) * 4
            for p in range(4):
                a("v_mul_f32 v%d, v%d, v%d" % (b0 + 2 * p, b0 + 2 * p, V_L))
                a("v_mul_f32 v%d, v%d, v%d" % (b0 + 2 * p + 1, b0 + 2 * p + 1, V_L))
                a("v_cvt_pk_bf16_f32 v%d, v%d, v%d" % (d + p, b0 + 2 * p, b0 + 2 * p + 1))
            a("buffer_store_dwordx4 %s, v%d, %s, s%d offen offset:%d" % (vr(d), T0, sr(S_WS), S_T0, dt * 1024 + half * 512))
    stamp(a)
    stamp_dump(a)
    a.lab("L_k1_end")
    a("s_endpgm")
    a.L += rare

def gen_k2(a):
    a.lab("oproj_kernel")
    a("s_cmp_ge_u32 s2, 256")
    a("s_cbranch_scc1 L_k2_end")
    stamp(a)
    a("s_load_dwordx2 s[8:9], s[0:1], 80")
    a("s_load_dwordx2 s[10:11], s[0:1], 96")
    a("s_and_b32 s3, s2, 7")
    a("s_lshr_b32 s4, s2, 3")
    a("s_and_b32 s5, s4, 7")
    a("s_lshr_b32 s4, s4, 3")
    a("s_lshl_b32 s3, s3, 2")
    a("s_add_u32 s4, s4, s3")
    a("s_lshr_b32 s3, s4, 4")
    a("s_and_b32 s4, s4, 15")
    if "--k2same" in sys.argv:
        a("s_mov_b32 s42, s3"); a("s_mov_b32 s43, s4"); a("s_mov_b32 s44, s5")
    a("v_lshrrev_b32 v1, 6, v0")
    a("v_and_b32 v0, 63, v0")
    a("s_nop 0")
    a("v_readfirstlane_b32 s6, v1")
    a("s_waitcnt lgkmcnt(0)")
    srd(a, 12, 8, SZ_OUT)
    srd(a, 16, 10, WS_BYTES)
    a("v_lshlrev_b32 v1, 4, v0")
    if "--k2same" in sys.argv:
        a("s_mov_b32 s3, 0"); a("s_mov_b32 s4, 0"); a("s_mov_b32 s5, 0")
    a("s_mul_i32 s20, s3, 96")
    a("s_mul_i32 s21, s4, 6")
    a("s_add_u32 s20, s20, s21")
    a("s_lshl_b32 s20, s20, 7")
    a("s_lshl_b32 s21, s6, 5")
    a("s_add_u32 s20, s20, s21")
    a("s_lshl_b32 s20, s20, 10")
    a("s_mul_i32 s22, s3, 40")
    a("s_mul_i32 s23, s5, 5")
    a("s_add_u32 s22, s22, s23")
    a("s_lshl_b32 s22, s22, 7")
    a("s_add_u32 s22, s22, s21")
    a("s_lshl_b32 s22, s22, 10")
    a("s_add_u32 s22, s22, 0x%x" % WS_WF)
    for i in range(6):
        a("s_add_u32 s%d, s20, %d" % (24 + i, i * 131072))
    for j in range(5):
        a("s_add_u32 s%d, s22, %d" % (30 + j, j * 131072))
    ACC = 0
    FB = 8
    NB = 5
    def ar(b, n=4):
        return "a[%d:%d]" % (b, b + n - 1)
    for i in range(120):
        a("v_accvgpr_write_b32 a%d, 0" % (ACC + i))
    NK = 32
    def loads(ks):
        b = FB + 44 * (ks % NB)
        L = []
        for f in range(11):
            L.append("buffer_load_dwordx4 %s, v1, s[16:19], s%d offen offset:%d" % (vr(b + 4 * f), 24 + f, (ks % 4) * 1024))
        if ks % 4 == 3:
            for f in range(11):
                L.append("s_add_u32 s%d, s%d, 4096" % (24 + f, 24 + f))
        return L
    for ks in range(NB - 1):
        for ins in loads(ks):
            a(ins)
    for ks in range(NK):
        nxt = ks + NB - 1
        ld = loads(nxt) if nxt < NK else []
        outstanding_after = min(NK - 1, ks + NB - 2) - ks
        a("s_waitcnt vmcnt(%d)" % (11 * outstanding_after))
        if ks in (0, 1, 8, 16, 24):
            stamp(a)
        b = FB + 44 * (ks % NB)
        li = 0
        m = 0
        for j in range(5):
            for i in range(6):
                a("v_mfma_f32_16x16x32_bf16 %s, %s, %s, %s" % (ar(ACC + 4 * (j * 6 + i)), vr(b + 24 + 4 * j), vr(b + 4 * i), ar(ACC + 4 * (j * 6 + i))))
                m += 1
                if li < len(ld) and m >= 2:
                    a(ld[li]); li += 1
        while li < len(ld):
            a(ld[li]); li += 1
    stamp(a)
    a("s_nop 15")
    a("s_mul_i32 s36, s6, 30720")
    a("v_add_u32 v2, s36, v1")
    for tl in range(30):
        a("ds_write_b128 v2, %s offset:%d" % (ar(ACC + 4 * tl), tl * 1024))
    a("s_lshl_b32 s36, s6, 10")
    a("v_add_u32 v2, s36, v1")
    a("v_add_u32 v5, 61440, v2")
    a("v_and_b32 v3, 15, v0")
    a("v_mul_u32_u24 v3, 2560, v3")
    a("v_lshrrev_b32 v4, 4, v0")
    a("v_lshl_add_u32 v3, v4, 3, v3")
    a("s_mul_i32 s37, s4, %d" % (96 * 2560))
    a("s_mul_i32 s38, s3, 1280")
    a("s_add_u32 s37, s37, s38")
    a("s_mul_i32 s38, s5, 160")
    a("s_add_u32 s37, s37, s38")
    a("s_waitcnt lgkmcnt(0)")
    a("s_barrier")
    stamp(a)
    for n in range(8):
        if n == 7:
            a("s_cmp_ge_u32 s6, 2")
            a("s_cbranch_scc1 L_k2_fin")
        for src_ in range(4):
            a("ds_read_b128 %s, v%d offset:%d" % (vr(FB + 16 * (n % 2) + 4 * src_), 2 if src_ < 2 else 5, (src_ % 2) * 30720 + n * 4096))
        a("s_add_u32 s39, s6, %d" % (4 * n))
        a("s_mul_i32 s40, s39, 43")
        a("s_lshr_b32 s40, s40, 8")
        a("s_mul_i32 s41, s40, 6")
        a("s_sub_u32 s41, s39, s41")
        a("s_mul_i32 s41, s41, %d" % (16 * 2560))
        a("s_lshl_b32 s40, s40, 5")
        a("s_add_u32 s41, s41, s40")
        a("s_add_u32 s41, s41, s37")
        a("s_waitcnt lgkmcnt(0)")
        b = FB + 16 * (n % 2)
        for r in range(4):
            a("v_add_f32 v%d, v%d, v%d" % (b + r, b + r, b + 4 + r))
            a("v_add_f32 v%d, v%d, v%d" % (b + 8 + r, b + 8 + r, b + 12 + r))
        for r in range(4):
            a("v_add_f32 v%d, v%d, v%d" % (b + r, b + r, b + 8 + r))
        a("v_cvt_pk_bf16_f32 v%d, v%d, v%d" % (b + 4, b, b + 1))
        a("v_cvt_pk_bf16_f32 v%d, v%d, v%d" % (b + 5, b + 2, b + 3))
        a("buffer_store_dwordx2 %s, v3, s[12:15], s41 offen" % vr(b + 4, 2))
    a.lab("L_k2_fin")
    stamp(a)
    stamp_dump(a, 6, "k2")
    a.lab("L_k2_end")
    a("s_endpgm")

def gen_stream(a):
    a.lab("stream_kernel")
    a("s_cmp_ge_u32 s2, 256")
    a("s_cbranch_scc1 L_st_end")
    a("s_lshr_b32 s3, s2, 7")
    a("s_and_b32 s4, s2, 127")
    a("s_mul_i32 s5, s3, 40")
    a("s_add_u32 s6, s0, s5")
    a("s_addc_u32 s7, s1, 0")
    a("s_load_dwordx4 s[8:11], s[6:7], 8")
    a("s_waitcnt lgkmcnt(0)")
    srd(a, 16, 8, SZ_KV)
    srd(a, 20, 10, SZ_KV)
    a("v_lshlrev_b32 v1, 4, v0")
    a("s_lshl_b32 s12, s4, 18")
    for i in range(16):
        a("buffer_load_dwordx4 %s, v1, s[16:19], s12 offen" % vr(4 + 8 * (i % 8)))
        a("buffer_load_dwordx4 %s, v1, s[20:23], s12 offen" % vr(8 + 8 * (i % 8)))
        a("s_add_u32 s12, s12, 16384")
    a("s_waitcnt vmcnt(0)")
    a.lab("L_st_end")
    a("s_endpgm")

def kd(a, name, vgpr, sgpr=102, acc=None):
    a.L.append(".p2align 6")
    a.L.append(".amdhsa_kernel %s" % name)
    a.L.append("  .amdhsa_next_free_vgpr %d" % vgpr)
    a.L.append("  .amdhsa_next_free_sgpr %d" % sgpr)
    a.L.append("  .amdhsa_accum_offset %d" % (acc if acc else (vgpr + 3) // 4 * 4))
    a.L.append("  .amdhsa_group_segment_fixed_size 0")
    a.L.append("  .amdhsa_kernarg_size 104")
    a.L.append("  .amdhsa_user_sgpr_count 2")
    a.L.append("  .amdhsa_user_sgpr_kernarg_segment_ptr 1")
    a.L.append("  .amdhsa_system_sgpr_workgroup_id_x 1")
    a.L.append(".end_amdhsa_kernel")

def main():
    hdr = open("cdna_kernels/%s.s.ref" % NAME).read().split("; Override launch geometry")[0]
    a = A()
    a.L.append(hdr.rstrip("\n"))
    if "--stream" in sys.argv:
        a.L.append("; @launch kernel=stream_kernel grid=(256,1,1) block=(1024,1,1) lds=0")
    a.L.append("; @launch kernel=attn_kernel grid=(256,1,1) block=(768,1,1) lds=%d" % LDS1)
    if "--twice" in sys.argv:
        a.L.append("; @launch kernel=attn_kernel grid=(256,1,1) block=(768,1,1) lds=%d" % LDS1)
    a.L.append("; @launch kernel=oproj_kernel grid=(256,1,1) block=(256,1,1) lds=122880")
    if "--k2twice" in sys.argv:
        a.L.append("; @launch kernel=oproj_kernel grid=(256,1,1) block=(256,1,1) lds=122880")
    a.L.append('.amdgcn_target "amdgcn-amd-amdhsa--gfx950"')
    a.L.append(".text")
    for nm, g in (("wprep_kernel", gen_k0), ("attn_kernel", gen_k1), ("oproj_kernel", gen_k2), ("stream_kernel", gen_stream)):
        a.L.append(".globl %s" % nm)
        a.L.append(".p2align 8")
        a.L.append(".type %s,@function" % nm)
        g(a)
    a.L.append('.section .rodata,"a"')
    kd(a, "wprep_kernel", 48)
    kd(a, "stream_kernel", 72)
    kd(a, "attn_kernel", 168)
    kd(a, "oproj_kernel", 228 + 120, acc=228)
    args = [x for x in sys.argv[1:] if not x.startswith("--")]
    out = args[0] if args else "cdna_kernels/%s.s" % NAME
    open(out, "w").write(a.text())

main()
```

```python
import sys

NAME = "concat_heads__gqa_block_cached__mha_block_cached__near_ridge"

class A:
    def __init__(self):
        self.L = []
    def __call__(self, s):
        self.L.append("    " + s)
    def lab(self, s):
        self.L.append(s + ":")
    def c(self, s):
        self.L.append("    ; " + s)
    def text(self):
        return "\n".join(self.L) + "\n"

def vr(b, n=4):
    return "v[%d:%d]" % (b, b + n - 1)
def sr(b, n=4):
    return "s[%d:%d]" % (b, b + n - 1)

WS_OF = 0
OF_BYTES = 2 * 96 * 128 * 1024
WS_WF = OF_BYTES
WF_BYTES = 2 * 40 * 128 * 1024
WS_BYTES = 268435456

SZ_X = 8 * 192 * 640 * 2
SZ_KV = 8 * 32 * 512 * 128 * 2
SZ_W = 640 * 4096 * 2
SZ_OUT = 8 * 192 * 1280 * 2

def srd(a, d, base, size):
    a("s_mov_b32 s%d, s%d" % (d, base))
    a("s_and_b32 s%d, s%d, 0xffff" % (d + 1, base + 1))
    a("s_mov_b32 s%d, 0x%x" % (d + 2, size))
    a("s_mov_b32 s%d, 0x00020000" % (d + 3))

def gen_k0(a):
    a.lab("wprep_kernel")
    a("s_cmp_ge_u32 s2, 256")
    a("s_cbranch_scc1 L_k0_end")
    a("s_lshr_b32 s3, s2, 7")
    a("s_and_b32 s4, s2, 127")
    a("s_mul_i32 s5, s3, 40")
    a("s_add_u32 s6, s0, s5")
    a("s_addc_u32 s7, s1, 0")
    a("s_load_dwordx2 s[8:9], s[6:7], 32")
    a("s_load_dwordx2 s[10:11], s[0:1], 96")
    a("v_lshrrev_b32 v1, 6, v0")
    a("v_and_b32 v0, 63, v0")
    a("s_nop 0")
    a("v_readfirstlane_b32 s12, v1")
    a("s_waitcnt lgkmcnt(0)")
    srd(a, 16, 8, SZ_W)
    srd(a, 20, 10, WS_BYTES)
    a("v_lshrrev_b32 v1, 4, v0")
    a("v_and_b32 v2, 15, v0")
    a("v_mul_u32_u24 v1, 5120, v1")
    a("v_lshl_add_u32 v1, v2, 4, v1")
    a("s_mul_i32 s13, s4, 40960")
    a("s_lshl_b32 s14, s12, 8")
    a("s_add_u32 s13, s13, s14")
    a("s_mul_i32 s15, s12, 8704")
    for P in range(8):
        a("s_add_u32 s24, s13, %d" % ((16 * (P // 4) + P % 4) * 1280))
        a("s_add_u32 m0, s15, %d" % (P * 1088))
        a("s_nop 0")
        a("buffer_load_dwordx4 v1, s[16:19], s24 offen lds")
    a("v_lshrrev_b32 v3, 5, v0")
    a("v_bfe_u32 v4, v0, 4, 1")
    a("v_bfe_u32 v5, v0, 2, 2")
    a("v_and_b32 v6, 3, v0")
    a("v_lshl_add_u32 v3, v3, 2, v5")
    a("v_mul_u32_u24 v3, 1088, v3")
    a("v_lshl_add_u32 v3, v4, 8, v3")
    a("v_lshl_add_u32 v3, v6, 3, v3")
    a("v_add_u32 v3, s15, v3")
    a("s_mul_i32 s25, s3, 40")
    a("s_lshl_b32 s26, s12, 3")
    a("s_add_u32 s25, s25, s26")
    a("s_lshl_b32 s25, s25, 7")
    a("s_add_u32 s25, s25, s4")
    a("s_lshl_b32 s25, s25, 10")
    a("s_add_u32 s25, s25, 0x%x" % WS_WF)
    a("v_lshlrev_b32 v7, 4, v0")
    a("s_waitcnt vmcnt(0)")
    for nt in range(8):
        a("ds_read_b64_tr_b16 %s, v3 offset:%d" % (vr(8 + 4 * nt, 2), nt * 32))
        a("ds_read_b64_tr_b16 %s, v3 offset:%d" % (vr(10 + 4 * nt, 2), nt * 32 + 512))
    a("s_waitcnt lgkmcnt(0)")
    for nt in range(8):
        a("buffer_store_dwordx4 %s, v7, s[20:23], s25 offen" % vr(8 + 4 * nt))
        a("s_add_u32 s25, s25, 0x%x" % (128 * 1024))
    a.lab("L_k0_end")
    a("s_endpgm")

SLOT = 34816
QPB = 29696
QP0 = 2 * SLOT
NQB = 3
LDS1 = 160 * 1024
V_ACC = 0
V_Q = 64
V_S = 96
V_NM = 112
V_KV = 128
V_KA0, V_KA1, V_VA, V_DK, V_L, V_T0, V_T1, V_T2 = 160, 161, 162, 163, 164, 165, 166, 167
V_FS = [64, 104]
V_XA0, V_XA1, V_WA, V_DQ = 144, 145, 146, 147
S_BLK, S_B, S_HP, S_W, S_HSEL, S_QT = 3, 4, 5, 6, 7, 44
S_X, S_K, S_V, S_WQ, S_WS = 20, 24, 28, 32, 40
S_D1, S_D2 = 48, 52
S_G1, S_G1S, S_G1A, S_L1, S_L1S = 56, 57, 58, 59, 60
S_G2, S_G2S, S_L2 = 61, 62, 63
S_T0, S_T1, S_T2, S_T3 = 64, 65, 66, 67
S_ROLE = 68
S_SC = 70

STAMPS = "--stamps" in sys.argv
_stamp_n = [0]
def stamp(a):
    if not STAMPS:
        return
    n = _stamp_n[0]; _stamp_n[0] += 1
    a("%s s[%d:%d]" % ("s_memrealtime" if "--rt" in sys.argv else "s_memtime", 72 + 2 * n, 73 + 2 * n))

def stamp_dump(a, S_W=6, tag="k1"):
    if not STAMPS:
        return
    n = _stamp_n[0]
    _stamp_n[0] = 0
    a("s_waitcnt lgkmcnt(0)")
    a("s_cmp_lg_u32 s2, 0")
    a("s_cbranch_scc1 L_sd_e_%s" % tag)
    if tag == "k1":
        a("s_and_b32 s64, s%d, 3" % S_W)
        a("s_cmp_lg_u32 s64, 0")
        a("s_cbranch_scc1 L_sd_e_%s" % tag)
    a("s_load_dwordx2 s[10:11], s[0:1], 88")
    a("s_waitcnt lgkmcnt(0)")
    srd(a, 12, 10, 256)
    a("s_lshl_b32 s64, s%d, %d" % (S_W, 4 if tag == "k1" else 6))
    a("v_mov_b32 v1, 0")
    for i in range(n):
        a("s_sub_u32 s65, s%d, s72" % (72 + 2 * i))
        a("v_mov_b32 v2, s65")
        a("buffer_store_dword v2, v1, s[12:15], s64 offen offset:%d" % (4 * i))
    a.lab("L_sd_e_%s" % tag)

TOUCH_STRIDE = 128
NTOUCH = 8
for x in sys.argv:
    if x.startswith("--touch="):
        TOUCH_STRIDE = int(x.split("=")[1])
    if x.startswith("--ntouch="):
        NTOUCH = int(x.split("=")[1])
TPACE = 1
NPRE = 2
TPER = 1
for x in sys.argv:
    if x.startswith("--tper="):
        TPER = int(x.split("=")[1])
XWT = "--noxwt" not in sys.argv
WOF = ""
for x in sys.argv:
    if x.startswith("--wof="):
        WOF = " " + x.split("=")[1].replace("+", " ")
WO_IT = 3
TSTART = 9
TF = " nt"
for x in sys.argv:
    if x.startswith("--woit="):
        WO_IT = int(x.split("=")[1])
    if x.startswith("--tstart="):
        TSTART = int(x.split("=")[1])
    if x.startswith("--tf="):
        TF = " " + x.split("=")[1].replace("+", " ")
KVF = ""
for x in sys.argv:
    if x.startswith("--kvf="):
        KVF = " " + x.split("=")[1].replace("+", " ")
PRIO = None
for x in sys.argv:
    if x.startswith("--prio="):
        PRIO = [int(c) for c in x.split("=")[1]]
for x in sys.argv:
    if x.startswith("--tpace="):
        TPACE = int(x.split("=")[1])
    if x.startswith("--npre="):
        NPRE = int(x.split("=")[1])
V_DW, V_WR, V_WST, V_TCH, V_WD = 148, 149, 150, 151, 152
S_WO = 36
S_WG, S_WL, S_WSO = 47, 45, 46
WTAIL = 4 * SLOT

def gen_k1(a):
    a.lab("attn_kernel")
    a("s_cmp_ge_u32 s2, 256")
    a("s_cbranch_scc1 L_k1_end")
    stamp(a)
    a("s_bfe_u32 s%d, s2, 0x10002" % S_BLK)
    a("s_lshr_b32 s%d, s2, 5" % S_B)
    a("s_and_b32 s%d, s2, 3" % S_HP)
    a("s_lshl_b32 s%d, s%d, 2" % (S_HP, S_HP))
    a("s_bfe_u32 s%d, s2, 0x20003" % S_T0)
    a("s_add_u32 s%d, s%d, s%d" % (S_HP, S_HP, S_T0))
    a("s_mul_i32 s%d, s%d, 40" % (S_T0, S_BLK))
    a("s_add_u32 s8, s0, s%d" % S_T0)
    a("s_addc_u32 s9, s1, 0")
    a("s_load_dwordx8 s[12:19], s[8:9], 0")
    a("s_load_dwordx2 s[10:11], s[0:1], 96")
    a("s_lshr_b32 s%d, s2, 7" % S_T1)
    a("s_mul_i32 s%d, s%d, 40" % (S_T0, S_T1))
    a("s_add_u32 s8, s0, s%d" % S_T0)
    a("s_addc_u32 s9, s1, 0")
    a("s_load_dwordx2 s[46:47], s[8:9], 32")
    a("v_lshrrev_b32 v1, 6, v0")
    a("v_and_b32 v0, 63, v0")
    a("s_nop 0")
    a("v_readfirstlane_b32 s%d, v1" % S_W)
    a("s_nop 3")
    a("s_cmp_ge_u32 s%d, 6" % S_W)
    a("s_cselect_b32 s%d, 1, 0" % S_HSEL)
    a("s_mul_i32 s%d, s%d, 6" % (S_T0, S_HSEL))
    a("s_sub_u32 s%d, s%d, s%d" % (S_QT, S_W, S_T0))
    a("s_lshr_b32 s%d, s%d, 2" % (S_ROLE, S_W))
    a("s_mov_b32 s%d, 0x3e0293ee" % S_SC)
    a("s_mov_b32 s%d, 0x3e0293ee" % (S_SC + 1))
    a("s_waitcnt lgkmcnt(0)")
    srd(a, S_X, 12, SZ_X)
    srd(a, S_K, 14, SZ_KV)
    srd(a, S_V, 16, SZ_KV)
    srd(a, S_WQ, 18, SZ_W)
    srd(a, S_WS, 10, WS_BYTES)
    srd(a, S_WO, 46, SZ_W)
    a("v_and_b32 v1, 31, v0")
    a("v_lshrrev_b32 v2, 5, v0")
    a("v_bfe_u32 v3, v0, 4, 1")
    a("v_bfe_u32 v4, v0, 2, 2")
    a("v_and_b32 v5, 3, v0")
    a("s_cmp_eq_u32 s%d, 0" % S_ROLE)
    for i in range(3):
        a("s_cselect_b32 s%d, s%d, s%d" % (S_D1 + i, S_X + i, S_WQ + i))
    a("s_mov_b32 s%d, 0x00020000" % (S_D1 + 3))
    a("s_mov_b32 s%d, 8192" % S_T0)
    a("s_cselect_b32 s%d, 20480, s%d" % (S_G1S, S_T0))
    a("s_cselect_b32 s%d, 64, 262144" % S_G1A)
    a("s_mov_b32 s%d, 1088" % S_T0)
    a("s_cselect_b32 s%d, 1024, s%d" % (S_L1S, S_T0))
    a("s_mul_i32 s%d, s%d, 192" % (S_T0, S_B))
    a("s_mul_i32 s%d, s%d, 48" % (S_T1, S_W))
    a("s_add_u32 s%d, s%d, s%d" % (S_T0, S_T0, S_T1))
    a("s_mul_i32 s%d, s%d, 1280" % (S_T0, S_T0))
    a("s_mul_i32 s%d, s%d, 3072" % (S_T1, S_W))
    a("s_add_u32 s%d, s%d, %d" % (S_T1, S_T1, QP0))
    a("s_sub_u32 s%d, s%d, 4" % (S_T2, S_W))
    a("s_lshl_b32 s%d, s%d, 16" % (S_T3, S_T2))
    a("s_lshl_b32 s98, s%d, 9" % S_HP)
    a("s_add_u32 s%d, s%d, s98" % (S_T3, S_T3))
    a("s_mul_i32 s%d, s%d, 4352" % (S_T2, S_T2))
    a("s_add_u32 s%d, s%d, %d" % (S_T2, S_T2, QP0 + 12288))
    a("s_cmp_eq_u32 s%d, 0" % S_ROLE)
    a("s_cselect_b32 s%d, s%d, s%d" % (S_G1, S_T0, S_T3))
    a("s_cselect_b32 s%d, s%d, s%d" % (S_L1, S_T1, S_T2))
    a("v_lshrrev_b32 v6, 2, v0")
    a("v_bfe_u32 v7, v0, 4, 2")
    a("v_xor_b32 v7, v5, v7")
    a("v_mul_u32_u24 v6, 1280, v6")
    a("v_lshl_add_u32 v6, v7, 4, v6")
    a("v_lshlrev_b32 v7, 15, v2")
    a("v_lshl_add_u32 v7, v1, 4, v7")
    a("s_cselect_b64 vcc, -1, 0")
    a("v_cndmask_b32 v%d, v7, v6, vcc" % V_DQ)
    a("s_sub_u32 s%d, s%d, 8" % (S_T0, S_W))
    a("s_and_b32 s%d, s%d, 1" % (S_T1, S_T0))
    a("s_lshl_b32 s%d, s%d, 5" % (S_T2, S_B))
    a("s_lshl_b32 s%d, s%d, 1" % (S_T3, S_HP))
    a("s_add_u32 s%d, s%d, s%d" % (S_T2, S_T2, S_T3))
    a("s_add_u32 s%d, s%d, s%d" % (S_T2, S_T2, S_T1))
    a("s_lshl_b32 s%d, s%d, 17" % (S_G2, S_T2))
    a("s_mul_i32 s%d, s%d, 8704" % (S_L2, S_T0))
    a("s_and_b32 s%d, s2, 127" % S_T1)
    a("s_mul_i32 s%d, s%d, 40960" % (S_WG, S_T1))
    a("s_lshl_b32 s%d, s%d, 8" % (S_T2, S_T0))
    a("s_add_u32 s%d, s%d, s%d" % (S_WG, S_WG, S_T2))
    a("s_lshr_b32 s%d, s2, 7" % S_T2)
    a("s_mul_i32 s%d, s%d, 40" % (S_T2, S_T2))
    a("s_lshl_b32 s%d, s%d, 3" % (S_T3, S_T0))
    a("s_add_u32 s%d, s%d, s%d" % (S_T2, S_T2, S_T3))
    a("s_lshl_b32 s%d, s%d, 7" % (S_T2, S_T2))
    a("s_add_u32 s%d, s%d, s%d" % (S_T2, S_T2, S_T1))
    a("s_lshl_b32 s%d, s%d, 10" % (S_T2, S_T2))
    a("s_add_u32 s%d, s%d, 0x%x" % (S_WSO, S_T2, WS_WF))
    a("s_cmp_lt_u32 s%d, 10" % S_W)
    for i in range(3):
        a("s_cselect_b32 s%d, s%d, s%d" % (S_D2 + i, S_K + i, S_V + i))
    a("s_mov_b32 s%d, 0x00020000" % (S_D2 + 3))
    a("v_lshrrev_b32 v6, 4, v0")
    a("v_and_b32 v7, 15, v0")
    a("v_xor_b32 v8, v7, v6")
    a("v_lshlrev_b32 v8, 4, v8")
    a("v_lshl_add_u32 v8, v6, 8, v8")
    a("v_lshlrev_b32 v7, 4, v7")
    a("v_mul_u32_u24 v9, 5120, v6")
    a("v_add_u32 v%d, v9, v7" % V_DW)
    a("v_lshl_add_u32 v7, v6, 10, v7")
    a("s_cselect_b64 vcc, -1, 0")
    a("v_cndmask_b32 v%d, v7, v8, vcc" % V_DK)
    a("v_mul_u32_u24 v%d, %d, v0" % (V_TCH, TOUCH_STRIDE))

    r2 = []
    def r2_wait_n(tag):
        idx = max(i for i, t in enumerate(r2) if t == tag)
        return len(r2) - 1 - idx

    def qp_dma(stage):
        buf = stage % NQB
        lab = "L_qd_%d" % stage
        a("s_cmp_ge_u32 s%d, 2" % S_ROLE)
        a("s_cbranch_scc1 %s_e" % lab)
        a("s_mov_b32 s%d, s%d" % (S_T0, S_G1))
        a("s_add_u32 s%d, s%d, %d" % (S_T1, S_L1, buf * QPB))
        for k in range(4):
            if k == 3:
                a("s_cmp_eq_u32 s%d, 0" % S_ROLE)
                a("s_cbranch_scc1 %s_x" % lab)
            a("s_mov_b32 m0, s%d" % S_T1)
            a("s_nop 0")
            a("buffer_load_dwordx4 v%d, %s, s%d offen lds" % (V_DQ, sr(S_D1), S_T0))
            if k < 3:
                a("s_add_u32 s%d, s%d, s%d" % (S_T0, S_T0, S_G1S))
                a("s_add_u32 s%d, s%d, s%d" % (S_T1, S_T1, S_L1S))
        a.lab(lab + "_x")
        a("s_add_u32 s%d, s%d, s%d" % (S_G1, S_G1, S_G1A))
        a.lab(lab + "_e")

    def r2_begin(tag):
        a("s_cmp_lt_u32 s%d, 2" % S_ROLE)
        a("s_cbranch_scc1 L_r2_%s" % tag)
    def r2_end(tag):
        a.lab("L_r2_%s" % tag)

    def kv_dma(stage, tag):
        slot = stage % 4
        lab = "L_kd_%s" % tag
        r2_begin(lab)
        a("s_cmp_lt_u32 s%d, 10" % S_W)
        a("s_cbranch_scc0 %s_v" % lab)
        for P in range(8):
            a("s_add_u32 s%d, s%d, %d" % (S_T0, S_G2, stage * 8192 + P * 1024))
            a("s_add_u32 m0, s%d, %d" % (S_L2, slot * SLOT + P * 1088))
            a("s_nop 0")
            a("buffer_load_dwordx4 v%d, %s, s%d offen%s lds" % (V_DK, sr(S_D2), S_T0, KVF))
        a("s_branch L_r2_%s" % lab)
        a.lab(lab + "_v")
        for P in range(8):
            a("s_add_u32 s%d, s%d, %d" % (S_T0, S_G2, stage * 8192 + (16 * (P // 4) + P % 4) * 256))
            a("s_add_u32 m0, s%d, %d" % (S_L2, slot * SLOT + P * 1088))
            a("s_nop 0")
            a("buffer_load_dwordx4 v%d, %s, s%d offen%s lds" % (V_DK, sr(S_D2), S_T0, KVF))
        r2_end(lab)
        r2.extend(["kv%d" % stage] * 8)

    def touch(stage, tag):
        n = 8192 // (64 * TOUCH_STRIDE)
        r2_begin("t" + tag)
        for k in range(n):
            a("s_add_u32 s%d, s%d, %d" % (S_T0, S_G2, stage * 8192 + k * 64 * TOUCH_STRIDE))
            a("buffer_load_dword v%d, v%d, %s, s%d offen%s" % (V_T0, V_TCH, sr(S_D2), S_T0, TF))
            r2.append("touch")
        r2_end("t" + tag)

    def wo_dma(tile4):
        for P in range(8):
            if tile4:
                a("s_add_u32 s%d, s%d, %d" % (S_T0, S_WG, 1024 + (16 * (P // 4) + P % 4) * 1280))
                a("s_mov_b32 m0, %d" % (WTAIL + P * 1088))
            else:
                a("s_add_u32 s%d, s%d, %d" % (S_T0, S_WG, (16 * (P // 4) + P % 4) * 1280))
                a("s_add_u32 m0, s%d, %d" % (S_L2, P * 1088))
            a("s_nop 0")
            a("buffer_load_dwordx4 v%d, %s, s%d offen%s lds" % (V_T0, sr(S_WO), S_T0, WOF))

    def wo_batch(bi, tile4):
        for q in range(2):
            nt = 2 * bi + q
            base = WTAIL if tile4 else 0
            a("ds_read_b64_tr_b16 %s, v%d offset:%d" % (vr(V_WD + 4 * q, 2), V_WR + (1 if tile4 else 0) * 0, nt * 32))
            a("ds_read_b64_tr_b16 %s, v%d offset:%d" % (vr(V_WD + 4 * q + 2, 2), V_WR, nt * 32 + 512))
        a("s_waitcnt lgkmcnt(0)")
        for q in range(2):
            nt = 2 * bi + q
            a("s_add_u32 s%d, s%d, %d" % (S_T0, S_WSO, (nt + (32 if tile4 else 0)) * 131072))
            a("buffer_store_dwordx4 %s, v%d, %s, s%d offen" % (vr(V_WD + 4 * q), V_WST, sr(S_WS), S_T0))

    def role_wait(tag, n0, n1, n2):
        lab = "L_rw_%s" % tag
        vals = [n0, n1, n2]
        for r in range(3):
            if vals[r] is None:
                continue
            a("s_cmp_lg_u32 s%d, %d" % (S_ROLE, r))
            a("s_cbranch_scc1 %s_%d" % (lab, r))
            a("s_waitcnt vmcnt(%d)" % vals[r])
            a.lab("%s_%d" % (lab, r))

    for st in range(3):
        qp_dma(st)
    a("s_barrier")
    if XWT:
        r2_begin("xwt")
        a("s_sub_u32 s%d, s%d, 8" % (S_T3, S_W))
        a("s_bfe_u32 s%d, s2, 0x20003" % S_T0)
        a("s_mul_i32 s%d, s%d, 48" % (S_T0, S_T0))
        a("s_mul_i32 s%d, s%d, 192" % (S_T1, S_B))
        a("s_add_u32 s%d, s%d, s%d" % (S_T0, S_T0, S_T1))
        a("s_mul_i32 s%d, s%d, 1280" % (S_T0, S_T0))
        a("s_lshl_b32 s%d, s%d, 7" % (S_T1, S_T3))
        a("s_add_u32 s%d, s%d, s%d" % (S_T0, S_T0, S_T1))
        a("v_min_u32 v6, 47, v0")
        a("v_mul_u32_u24 v6, 1280, v6")
        a("buffer_load_dword v%d, v6, %s, s%d offen" % (V_T0, sr(S_X), S_T0))
        a("buffer_load_dword v%d, v6, %s, s%d offen offset:512" % (V_T0, sr(S_X), S_T0))
        a("s_cmp_ge_u32 s%d, 2" % S_T3)
        a("s_cbranch_scc1 L_xwt_skip")
        a("buffer_load_dword v%d, v6, %s, s%d offen offset:1024" % (V_T0, sr(S_X), S_T0))
        a.lab("L_xwt_skip")
        a("s_mul_i32 s%d, s%d, 80" % (S_T0, S_B))
        a("s_lshl_b32 s%d, s%d, 4" % (S_T1, S_T3))
        a("s_add_u32 s%d, s%d, s%d" % (S_T0, S_T0, S_T1))
        a("s_lshl_b32 s%d, s%d, 13" % (S_T0, S_T0))
        a("s_lshl_b32 s%d, s%d, 9" % (S_T1, S_HP))
        a("s_add_u32 s%d, s%d, s%d" % (S_T0, S_T0, S_T1))
        a("v_lshrrev_b32 v6, 2, v0")
        a("v_lshlrev_b32 v6, 13, v6")
        a("v_lshl_add_u32 v6, v5, 7, v6")
        a("buffer_load_dword v%d, v6, %s, s%d offen" % (V_T0, sr(S_WQ), S_T0))
        a("s_cmp_lg_u32 s%d, 0" % S_T3)
        a("s_cbranch_scc1 L_xwt_skip2")
        a("s_add_u32 s%d, s%d, %d" % (S_T0, S_T0, 64 * 8192))
        a("buffer_load_dword v%d, v6, %s, s%d offen" % (V_T0, sr(S_WQ), S_T0))
        a.lab("L_xwt_skip2")
        r2_end("xwt")
    kv_dma(0, "p0")
    kv_dma(1, "p1")
    tq = list(range(2, 2 + NTOUCH))
    a("s_lshl_b32 s%d, s%d, 5" % (S_T0, S_QT))
    a("v_add_u32 v6, s%d, v1" % S_T0)
    a("v_bfe_u32 v7, v6, 2, 2")
    a("v_xor_b32 v8, v2, v7")
    a("v_lshlrev_b32 v6, 6, v6")
    a("v_lshl_add_u32 v%d, v8, 4, v6" % V_XA0)
    a("v_xor_b32 v8, 2, v8")
    a("v_lshl_add_u32 v%d, v8, 4, v6" % V_XA1)
    a("v_add_u32 v%d, %d, v%d" % (V_XA0, QP0, V_XA0))
    a("v_add_u32 v%d, %d, v%d" % (V_XA1, QP0, V_XA1))
    a("v_lshl_add_u32 v6, v2, 2, v4")
    a("v_mul_u32_u24 v6, 1088, v6")
    a("v_lshl_add_u32 v6, v3, 5, v6")
    a("v_and_b32 v7, 1, v5")
    a("v_lshl_add_u32 v6, v7, 4, v6")
    a("v_lshrrev_b32 v7, 1, v5")
    a("v_lshl_add_u32 v6, v7, 3, v6")
    a("s_lshl_b32 s%d, s%d, 8" % (S_T0, S_HSEL))
    a("s_add_u32 s%d, s%d, %d" % (S_T0, S_T0, QP0 + 12288))
    a("v_add_u32 v%d, s%d, v6" % (V_WA, S_T0))
    a("v_lshrrev_b32 v6, 2, v1")
    a("v_mul_u32_u24 v6, 1088, v6")
    a("v_and_b32 v7, 3, v1")
    a("v_lshl_add_u32 v6, v7, 8, v6")
    a("v_xor_b32 v8, v2, v7")
    a("s_mul_i32 s%d, s%d, 8704" % (S_T0, S_HSEL))
    a("v_add_u32 v6, s%d, v6" % S_T0)
    a("v_lshl_add_u32 v%d, v8, 4, v6" % V_KA0)
    a("v_xor_b32 v8, 2, v8")
    a("v_lshl_add_u32 v%d, v8, 4, v6" % V_KA1)
    a("v_mul_u32_u24 v6, 1088, v4")
    a("v_lshl_add_u32 v6, v2, 8, v6")
    a("v_lshl_add_u32 v6, v3, 5, v6")
    a("v_lshl_add_u32 v6, v5, 3, v6")
    a("s_add_u32 s%d, s%d, 17408" % (S_T0, S_T0))
    a("v_add_u32 v%d, s%d, v6" % (V_VA, S_T0))
    a("v_lshl_add_u32 v6, v2, 2, v4")
    a("v_mul_u32_u24 v6, 1088, v6")
    a("v_lshl_add_u32 v6, v3, 8, v6")
    a("v_lshl_add_u32 v6, v5, 3, v6")
    a("v_add_u32 v%d, s%d, v6" % (V_WR, S_L2))
    a("v_lshlrev_b32 v%d, 4, v0" % V_WST)
    a("v_mov_b32 v%d, v0" % V_T2)

    def qp_reads(stage, fs):
        base = V_FS[fs]
        L = []
        for ks in range(2):
            L.append("ds_read_b128 %s, v%d" % (vr(base + 4 * ks), V_XA0 + ks))
            for t in range(4):
                d = base + 8 + (ks * 4 + t) * 4
                for u in range(2):
                    L.append("ds_read_b64_tr_b16 %s, v%d offset:%d" % (vr(d + 2 * u, 2), V_WA, ks * 8704 + u * 512 + t * 64))
        return L

    def qp_addr_adv(stage_from):
        d = QPB if (stage_from % NQB) != NQB - 1 else -(NQB - 1) * QPB
        for r in (V_XA0, V_XA1, V_WA):
            if d > 0:
                a("v_add_u32 v%d, %d, v%d" % (r, d, r))
            else:
                a("v_subrev_u32 v%d, %d, v%d" % (r, -d, r))

    role_wait("pre", 6, 8, None)
    a("s_barrier")
    stamp(a)
    for ins in qp_reads(0, 0):
        a(ins)
    qp_addr_adv(0)
    NQ = 20
    for j in range(NQ):
        a.c("---- qproj iter %d" % j)
        if j in (5, 10, 15):
            stamp(a)
        if j + 1 <= NQ - 1:
            rem = 1 if j + 2 <= NQ - 1 else 0
            role_wait("q%d" % j, 3 * rem, 4 * rem, None)
        a("s_waitcnt lgkmcnt(0)")
        a("s_barrier")
        if j + 3 < NQ:
            qp_dma(j + 3)
        if tq and j >= TSTART and (j - TSTART) % TPACE == 0:
            for _i in range(TPER):
                if tq: touch(tq.pop(0), "q%d_%d" % (j, _i))
        if j == 19:
            kv_dma(2, "q19a")
            kv_dma(3, "q19b")
        a("s_waitcnt lgkmcnt(0)")
        fs = j & 1
        base = V_FS[fs]
        rd = qp_reads(j + 1, fs ^ 1) if j + 1 < NQ else []
        mf = []
        for ks in range(2):
            for t in range(4):
                c = "0" if (j == 0 and ks == 0) else vr(V_ACC + 16 * t, 16)
                mf.append("v_mfma_f32_32x32x16_bf16 %s, %s, %s, %s" % (
                    vr(V_ACC + 16 * t, 16), vr(base + 8 + (ks * 4 + t) * 4), vr(base + 4 * ks), c))
        ri = 0
        for m in range(8):
            a(mf[m])
            n = 3 if m < 2 else 2
            for _ in range(n):
                if ri < len(rd):
                    a(rd[ri]); ri += 1
        while ri < len(rd):
            a(rd[ri]); ri += 1
        if j + 1 < NQ:
            qp_addr_adv(j + 1)
    a.c("---- q convert")
    stamp(a)
    role_wait("a_pre2", None, None, r2_wait_n("kv0"))
    a("s_nop 15")
    for t in range(4):
        for p in range(8):
            i0 = V_ACC + 16 * t + 2 * p
            a("v_pk_mul_f32 %s, %s, %s" % (vr(i0, 2), vr(i0, 2), sr(S_SC, 2)))
            a("v_cvt_pk_bf16_f32 v%d, v%d, v%d" % (V_Q + t * 8 + p, i0, i0 + 1))
    a("v_mov_b32 v%d, 0" % V_L)

    def k_reads(stage):
        L = []
        for s in range(8):
            L.append("ds_read_b128 %s, v%d offset:%d" % (vr(V_KV + 4 * s), V_KA0 + (s & 1), (s >> 1) * 64))
        return L
    def v_reads():
        L = []
        for sl in range(2):
            for dt in range(4):
                f = sl * 4 + dt
                for u in range(2):
                    L.append("ds_read_b64_tr_b16 %s, v%d offset:%d" % (vr(V_KV + 4 * f + 2 * u, 2), V_VA, sl * 4352 + u * 512 + dt * 64))
        return L
    def slot_adv(regs, stage_from):
        d = SLOT if (stage_from % 4) != 3 else -3 * SLOT
        for r in regs:
            if d > 0:
                a("v_add_u32 v%d, %d, v%d" % (r, d, r))
            else:
                a("v_subrev_u32 v%d, %d, v%d" % (r, -d, r))

    a("s_barrier")
    for ins in k_reads(0):
        a(ins)
    slot_adv((V_KA0, V_KA1), 0)
    NT = 16
    rare = []
    for t in range(NT):
        a.c("---- attn stage %d" % t)
        if t in (0, 1, 4, 8, 12):
            stamp(a)
        if t + 1 < NT:
            role_wait("a%d" % t, None, None, r2_wait_n("kv%d" % (t + 1)))
        a("s_barrier")
        if t >= 1 and t + 3 < NT:
            kv_dma(t + 3, "a%d" % t)
        if t == 13:
            a("v_lshrrev_b32 v%d, 4, v%d" % (V_T0, V_T2))
            a("v_and_b32 v%d, 15, v%d" % (V_T1, V_T2))
            a("v_mul_u32_u24 v%d, 5120, v%d" % (V_T0, V_T0))
            a("v_lshl_add_u32 v%d, v%d, 4, v%d" % (V_T0, V_T1, V_T0))
            r2_begin("wo")
            a("s_cmp_lg_u32 s%d, 8" % S_W)
            a("s_cbranch_scc1 L_wo4_skip")
            wo_dma(True)
            a.lab("L_wo4_skip")
            wo_dma(False)
            r2_end("wo")
            r2.extend(["wo"] * 8)
        if PRIO: a("s_setprio %d" % PRIO[0])
        a("s_waitcnt lgkmcnt(0)")
        vrd = v_reads()
        S = V_S
        for s in range(8):
            c = ("0" if t == 0 else vr(V_NM, 16)) if s == 0 else vr(S, 16)
            a("v_mfma_f32_32x32x16_bf16 %s, %s, %s, %s" % (vr(S, 16), vr(V_KV + 4 * s), vr(V_Q + 4 * s), c))
            if s >= 1:
                a(vrd[2 * (s - 1)]); a(vrd[2 * (s - 1) + 1])
        a(vrd[14]); a(vrd[15])
        slot_adv((V_VA,), t)
        if PRIO: a("s_setprio %d" % PRIO[1])
        a("s_nop 7")
        a("s_nop 1")
        T0, T1 = V_T0, V_T1
        a("v_max3_f32 v%d, v%d, v%d, v%d" % (T0, S, S + 1, S + 2))
        a("v_max3_f32 v%d, v%d, v%d, v%d" % (T1, S + 3, S + 4, S + 5))
        a("v_max3_f32 v%d, v%d, v%d, v%d" % (T0, T0, S + 6, S + 7))
        a("v_max3_f32 v%d, v%d, v%d, v%d" % (T1, T1, S + 8, S + 9))
        a("v_max3_f32 v%d, v%d, v%d, v%d" % (T0, T0, S + 10, S + 11))
        a("v_max3_f32 v%d, v%d, v%d, v%d" % (T1, T1, S + 12, S + 13))
        a("v_max3_f32 v%d, v%d, v%d, v%d" % (T0, T0, S + 14, S + 15))
        a("v_max_f32 v%d, v%d, v%d" % (T0, T0, T1))
        if t == 0:
            a("v_mov_b32 v%d, v%d" % (T1, T0))
            a("s_nop 1")
            a("v_permlane32_swap_b32 v%d, v%d" % (T0, T1))
            a("s_nop 1")
            a("v_max_f32 v%d, v%d, v%d" % (T0, T0, T1))
            for i in range(16):
                a("v_sub_f32 v%d, v%d, v%d" % (S + i, S + i, T0))
            for i in range(16):
                a("v_sub_f32 v%d, 0, v%d" % (V_NM + i, T0))
        else:
            a("v_cmp_lt_f32 vcc, 0x41000000, v%d" % T0)
            a("s_cbranch_vccnz L_rare_%d" % t)
            a.lab("L_back_%d" % t)
            R = []
            R.append("L_rare_%d:" % t)
            R.append("    v_mov_b32 v%d, v%d" % (T1, T0))
            R.append("    s_nop 1")
            R.append("    v_permlane32_swap_b32 v%d, v%d" % (T0, T1))
            R.append("    s_nop 1")
            R.append("    v_max_f32 v%d, v%d, v%d" % (T0, T0, T1))
            R.append("    v_max_f32 v%d, 0, v%d" % (T0, T0))
            R.append("    v_exp_f32 v%d, -v%d" % (T1, T0))
            for i in range(16):
                R.append("    v_sub_f32 v%d, v%d, v%d" % (S + i, S + i, T0))
            for i in range(16):
                R.append("    v_sub_f32 v%d, v%d, v%d" % (V_NM + i, V_NM + i, T0))
            for i in range(64):
                R.append("    v_mul_f32 v%d, v%d, v%d" % (V_ACC + i, V_ACC + i, T1))
            R.append("    v_mul_f32 v%d, v%d, v%d" % (V_L, V_L, T1))
            R.append("    s_nop 1")
            R.append("    s_branch L_back_%d" % t)
            rare += R
        for i in range(16):
            a("v_exp_f32 v%d, v%d" % (S + i, S + i))
        for i in range(16):
            a("v_add_f32 v%d, v%d, v%d" % (V_L, V_L, S + i))
        for p in range(4):
            a("v_cvt_pk_bf16_f32 v%d, v%d, v%d" % (S + p, S + 2 * p, S + 2 * p + 1))
        for p in range(4):
            a("v_cvt_pk_bf16_f32 v%d, v%d, v%d" % (S + 8 + p, S + 8 + 2 * p, S + 8 + 2 * p + 1))
        if PRIO: a("s_setprio %d" % PRIO[2])
        a("s_waitcnt lgkmcnt(0)")
        krd = k_reads(t + 1) if t + 1 < NT else []
        for f in range(8):
            sl, dt = f // 4, f % 4
            c = "0" if (t == 0 and sl == 0) else vr(V_ACC + 16 * dt, 16)
            a("v_mfma_f32_32x32x16_bf16 %s, %s, %s, %s" % (vr(V_ACC + 16 * dt, 16), vr(V_KV + 4 * f), vr(S + 8 * sl), c))
            if f >= 1 and krd:
                a(krd[f - 1])
        if krd:
            a(krd[7])
            slot_adv((V_KA0, V_KA1), t + 1)
    a.c("---- epilogue")
    stamp(a)
    T0, T1 = V_T0, V_T1
    a("v_mov_b32 v%d, v%d" % (T1, V_L))
    a("s_nop 1")
    a("v_permlane32_swap_b32 v%d, v%d" % (V_L, T1))
    a("s_nop 1")
    a("v_add_f32 v%d, v%d, v%d" % (V_L, V_L, T1))
    a("v_rcp_f32 v%d, v%d" % (V_L, V_L))
    a("s_mul_i32 s%d, s%d, 96" % (S_T0, S_BLK))
    a("s_mul_i32 s%d, s%d, 12" % (S_T1, S_B))
    a("s_add_u32 s%d, s%d, s%d" % (S_T0, S_T0, S_T1))
    a("s_lshl_b32 s%d, s%d, 1" % (S_T1, S_QT))
    a("s_add_u32 s%d, s%d, s%d" % (S_T0, S_T0, S_T1))
    a("s_lshl_b32 s%d, s%d, 7" % (S_T0, S_T0))
    a("s_lshl_b32 s%d, s%d, 1" % (S_T1, S_HP))
    a("s_add_u32 s%d, s%d, s%d" % (S_T1, S_T1, S_HSEL))
    a("s_lshl_b32 s%d, s%d, 2" % (S_T1, S_T1))
    a("s_add_u32 s%d, s%d, s%d" % (S_T0, S_T0, S_T1))
    a("s_lshl_b32 s%d, s%d, 10" % (S_T0, S_T0))
    ln = V_T2
    a("v_and_b32 v%d, 15, v%d" % (T0, ln))
    a("v_bfe_u32 v%d, v%d, 4, 1" % (T1, ln))
    a("v_lshlrev_b32 v%d, 17, v%d" % (T1, T1))
    a("v_lshl_add_u32 v%d, v%d, 4, v%d" % (T0, T0, T1))
    a("v_lshrrev_b32 v%d, 5, v%d" % (T1, ln))
    a("v_lshl_add_u32 v%d, v%d, 8, v%d" % (T0, T1, T0))
    a("s_nop 7")
    for dt in range(4):
        for half in range(2):
            b0 = V_ACC + 16 * dt + 8 * half
            d = V_Q + (dt * 2 + half) * 4
            for p in range(4):
                a("v_mul_f32 v%d, v%d, v%d" % (b0 + 2 * p, b0 + 2 * p, V_L))
                a("v_mul_f32 v%d, v%d, v%d" % (b0 + 2 * p + 1, b0 + 2 * p + 1, V_L))
                a("v_cvt_pk_bf16_f32 v%d, v%d, v%d" % (d + p, b0 + 2 * p, b0 + 2 * p + 1))
            a("buffer_store_dwordx4 %s, v%d, %s, s%d offen offset:%d" % (vr(d), T0, sr(S_WS), S_T0, dt * 1024 + half * 512))
    r2_begin("wofin")
    ln = V_T2
    a("v_lshrrev_b32 v1, 5, v%d" % ln)
    a("v_bfe_u32 v2, v%d, 4, 1" % ln)
    a("v_bfe_u32 v3, v%d, 2, 2" % ln)
    a("v_and_b32 v4, 3, v%d" % ln)
    a("v_lshl_add_u32 v1, v1, 2, v3")
    a("v_mul_u32_u24 v1, 1088, v1")
    a("v_lshl_add_u32 v1, v2, 8, v1")
    a("v_lshl_add_u32 v1, v4, 3, v1")
    a("v_add_u32 v2, s%d, v1" % S_L2)
    a("v_add_u32 v3, %d, v1" % WTAIL)
    a("v_lshlrev_b32 v4, 4, v%d" % ln)
    a("s_waitcnt vmcnt(8)")
    for tile4 in (False, True):
        if tile4:
            a("s_cmp_lg_u32 s%d, 8" % S_W)
            a("s_cbranch_scc1 L_r2_wofin")
        for nt in range(8):
            a("ds_read_b64_tr_b16 %s, v%d offset:%d" % (vr(8 + 4 * nt, 2), 3 if tile4 else 2, nt * 32))
            a("ds_read_b64_tr_b16 %s, v%d offset:%d" % (vr(10 + 4 * nt, 2), 3 if tile4 else 2, nt * 32 + 512))
        a("s_waitcnt lgkmcnt(0)")
        for nt in range(8):
            a("s_add_u32 s%d, s%d, %d" % (S_T0, S_WSO, (nt + (32 if tile4 else 0)) * 131072))
            a("buffer_store_dwordx4 %s, v4, %s, s%d offen" % (vr(8 + 4 * nt), sr(S_WS), S_T0))
        a("s_nop 1")
    r2_end("wofin")
    stamp(a)
    stamp_dump(a)
    a.lab("L_k1_end")
    a("s_endpgm")
    a.L += rare

def gen_k2(a):
    a.lab("oproj_kernel")
    a("s_cmp_ge_u32 s2, 256")
    a("s_cbranch_scc1 L_k2_end")
    stamp(a)
    a("s_load_dwordx2 s[8:9], s[0:1], 80")
    a("s_load_dwordx2 s[10:11], s[0:1], 96")
    a("s_and_b32 s3, s2, 7")
    a("s_lshr_b32 s4, s2, 3")
    a("s_and_b32 s5, s4, 7")
    a("s_lshr_b32 s4, s4, 3")
    a("s_lshl_b32 s3, s3, 2")
    a("s_add_u32 s4, s4, s3")
    a("s_lshr_b32 s3, s4, 4")
    a("s_and_b32 s4, s4, 15")
    if "--k2same" in sys.argv:
        a("s_mov_b32 s42, s3"); a("s_mov_b32 s43, s4"); a("s_mov_b32 s44, s5")
    a("v_lshrrev_b32 v1, 6, v0")
    a("v_and_b32 v0, 63, v0")
    a("s_nop 0")
    a("v_readfirstlane_b32 s6, v1")
    a("s_waitcnt lgkmcnt(0)")
    srd(a, 12, 8, SZ_OUT)
    srd(a, 16, 10, WS_BYTES)
    a("v_lshlrev_b32 v1, 4, v0")
    if "--k2same" in sys.argv:
        a("s_mov_b32 s3, 0"); a("s_mov_b32 s4, 0"); a("s_mov_b32 s5, 0")
    a("s_mul_i32 s20, s3, 96")
    a("s_mul_i32 s21, s4, 6")
    a("s_add_u32 s20, s20, s21")
    a("s_lshl_b32 s20, s20, 7")
    a("s_lshl_b32 s21, s6, 5")
    a("s_add_u32 s20, s20, s21")
    a("s_lshl_b32 s20, s20, 10")
    a("s_mul_i32 s22, s3, 40")
    a("s_mul_i32 s23, s5, 5")
    a("s_add_u32 s22, s22, s23")
    a("s_lshl_b32 s22, s22, 7")
    a("s_add_u32 s22, s22, s21")
    a("s_lshl_b32 s22, s22, 10")
    a("s_add_u32 s22, s22, 0x%x" % WS_WF)
    for i in range(6):
        a("s_add_u32 s%d, s20, %d" % (24 + i, i * 131072))
    for j in range(5):
        a("s_add_u32 s%d, s22, %d" % (30 + j, j * 131072))
    ACC = 0
    FB = 8
    NB = 5
    def ar(b, n=4):
        return "a[%d:%d]" % (b, b + n - 1)
    for i in range(120):
        a("v_accvgpr_write_b32 a%d, 0" % (ACC + i))
    NK = 32
    def loads(ks):
        b = FB + 44 * (ks % NB)
        L = []
        for f in range(11):
            L.append("buffer_load_dwordx4 %s, v1, s[16:19], s%d offen offset:%d" % (vr(b + 4 * f), 24 + f, (ks % 4) * 1024))
        if ks % 4 == 3:
            for f in range(11):
                L.append("s_add_u32 s%d, s%d, 4096" % (24 + f, 24 + f))
        return L
    for ks in range(NB - 1):
        for ins in loads(ks):
            a(ins)
    for ks in range(NK):
        nxt = ks + NB - 1
        ld = loads(nxt) if nxt < NK else []
        outstanding_after = min(NK - 1, ks + NB - 2) - ks
        a("s_waitcnt vmcnt(%d)" % (11 * outstanding_after))
        if ks in (0, 1, 8, 16, 24):
            stamp(a)
        b = FB + 44 * (ks % NB)
        li = 0
        m = 0
        for j in range(5):
            for i in range(6):
                a("v_mfma_f32_16x16x32_bf16 %s, %s, %s, %s" % (ar(ACC + 4 * (j * 6 + i)), vr(b + 24 + 4 * j), vr(b + 4 * i), ar(ACC + 4 * (j * 6 + i))))
                m += 1
                if li < len(ld) and m >= 2:
                    a(ld[li]); li += 1
        while li < len(ld):
            a(ld[li]); li += 1
    stamp(a)
    a("s_nop 15")
    a("s_mul_i32 s36, s6, 30720")
    a("v_add_u32 v2, s36, v1")
    for tl in range(30):
        a("ds_write_b128 v2, %s offset:%d" % (ar(ACC + 4 * tl), tl * 1024))
    a("s_lshl_b32 s36, s6, 10")
    a("v_add_u32 v2, s36, v1")
    a("v_add_u32 v5, 61440, v2")
    a("v_and_b32 v3, 15, v0")
    a("v_mul_u32_u24 v3, 2560, v3")
    a("v_lshrrev_b32 v4, 4, v0")
    a("v_lshl_add_u32 v3, v4, 3, v3")
    a("s_mul_i32 s37, s4, %d" % (96 * 2560))
    a("s_mul_i32 s38, s3, 1280")
    a("s_add_u32 s37, s37, s38")
    a("s_mul_i32 s38, s5, 160")
    a("s_add_u32 s37, s37, s38")
    a("s_waitcnt lgkmcnt(0)")
    a("s_barrier")
    stamp(a)
    for n in range(8):
        if n == 7:
            a("s_cmp_ge_u32 s6, 2")
            a("s_cbranch_scc1 L_k2_fin")
        for src_ in range(4):
            a("ds_read_b128 %s, v%d offset:%d" % (vr(FB + 16 * (n % 2) + 4 * src_), 2 if src_ < 2 else 5, (src_ % 2) * 30720 + n * 4096))
        a("s_add_u32 s39, s6, %d" % (4 * n))
        a("s_mul_i32 s40, s39, 43")
        a("s_lshr_b32 s40, s40, 8")
        a("s_mul_i32 s41, s40, 6")
        a("s_sub_u32 s41, s39, s41")
        a("s_mul_i32 s41, s41, %d" % (16 * 2560))
        a("s_lshl_b32 s40, s40, 5")
        a("s_add_u32 s41, s41, s40")
        a("s_add_u32 s41, s41, s37")
        a("s_waitcnt lgkmcnt(0)")
        b = FB + 16 * (n % 2)
        for r in range(4):
            a("v_add_f32 v%d, v%d, v%d" % (b + r, b + r, b + 4 + r))
            a("v_add_f32 v%d, v%d, v%d" % (b + 8 + r, b + 8 + r, b + 12 + r))
        for r in range(4):
            a("v_add_f32 v%d, v%d, v%d" % (b + r, b + r, b + 8 + r))
        a("v_cvt_pk_bf16_f32 v%d, v%d, v%d" % (b + 4, b, b + 1))
        a("v_cvt_pk_bf16_f32 v%d, v%d, v%d" % (b + 5, b + 2, b + 3))
        a("buffer_store_dwordx2 %s, v3, s[12:15], s41 offen" % vr(b + 4, 2))
    a.lab("L_k2_fin")
    stamp(a)
    stamp_dump(a, 6, "k2")
    a.lab("L_k2_end")
    a("s_endpgm")

def gen_stream(a):
    a.lab("stream_kernel")
    a("s_cmp_ge_u32 s2, 256")
    a("s_cbranch_scc1 L_st_end")
    a("s_lshr_b32 s3, s2, 7")
    a("s_and_b32 s4, s2, 127")
    a("s_mul_i32 s5, s3, 40")
    a("s_add_u32 s6, s0, s5")
    a("s_addc_u32 s7, s1, 0")
    a("s_load_dwordx4 s[8:11], s[6:7], 8")
    a("s_waitcnt lgkmcnt(0)")
    srd(a, 16, 8, SZ_KV)
    srd(a, 20, 10, SZ_KV)
    a("v_lshlrev_b32 v1, 4, v0")
    a("s_lshl_b32 s12, s4, 18")
    for i in range(16):
        fl = ""
        for x in sys.argv:
            if x.startswith("--sflag="):
                fl = " " + x.split("=")[1].replace("+", " ")
        a("buffer_load_dwordx4 %s, v1, s[16:19], s12 offen%s" % (vr(4 + 8 * (i % 8)), fl))
        a("buffer_load_dwordx4 %s, v1, s[20:23], s12 offen%s" % (vr(8 + 8 * (i % 8)), fl))
        a("s_add_u32 s12, s12, 16384")
    a("s_waitcnt vmcnt(0)")
    a.lab("L_st_end")
    a("s_endpgm")

def kd(a, name, vgpr, sgpr=102, acc=None):
    a.L.append(".p2align 6")
    a.L.append(".amdhsa_kernel %s" % name)
    a.L.append("  .amdhsa_next_free_vgpr %d" % vgpr)
    a.L.append("  .amdhsa_next_free_sgpr %d" % sgpr)
    a.L.append("  .amdhsa_accum_offset %d" % (acc if acc else (vgpr + 3) // 4 * 4))
    a.L.append("  .amdhsa_group_segment_fixed_size 0")
    a.L.append("  .amdhsa_kernarg_size 104")
    a.L.append("  .amdhsa_user_sgpr_count 2")
    a.L.append("  .amdhsa_user_sgpr_kernarg_segment_ptr 1")
    a.L.append("  .amdhsa_system_sgpr_workgroup_id_x 1")
    a.L.append(".end_amdhsa_kernel")

def main():
    hdr = open("cdna_kernels/%s.s.ref" % NAME).read().split("; Override launch geometry")[0]
    a = A()
    a.L.append(hdr.rstrip("\n"))
    if "--stream" in sys.argv:
        a.L.append("; @launch kernel=stream_kernel grid=(256,1,1) block=(1024,1,1) lds=0")
    a.L.append("; @launch kernel=attn_kernel grid=(256,1,1) block=(768,1,1) lds=%d" % LDS1)
    if "--twice" in sys.argv:
        a.L.append("; @launch kernel=attn_kernel grid=(256,1,1) block=(768,1,1) lds=%d" % LDS1)
    a.L.append("; @launch kernel=oproj_kernel grid=(256,1,1) block=(256,1,1) lds=122880")
    if "--k2twice" in sys.argv:
        a.L.append("; @launch kernel=oproj_kernel grid=(256,1,1) block=(256,1,1) lds=122880")
    a.L.append('.amdgcn_target "amdgcn-amd-amdhsa--gfx950"')
    a.L.append(".text")
    for nm, g in (("wprep_kernel", gen_k0), ("attn_kernel", gen_k1), ("oproj_kernel", gen_k2), ("stream_kernel", gen_stream)):
        a.L.append(".globl %s" % nm)
        a.L.append(".p2align 8")
        a.L.append(".type %s,@function" % nm)
        g(a)
    a.L.append('.section .rodata,"a"')
    kd(a, "wprep_kernel", 48)
    kd(a, "stream_kernel", 72)
    kd(a, "attn_kernel", 168)
    kd(a, "oproj_kernel", 228 + 120, acc=228)
    args = [x for x in sys.argv[1:] if not x.startswith("--")]
    out = args[0] if args else "cdna_kernels/%s.s" % NAME
    open(out, "w").write(a.text())

main()
```

```python
import sys

NAME = "concat_heads__gqa_block_cached__mha_block_cached__near_ridge"

class A:
    def __init__(self):
        self.L = []
    def __call__(self, s):
        self.L.append("    " + s)
    def lab(self, s):
        self.L.append(s + ":")
    def c(self, s):
        self.L.append("    ; " + s)
    def text(self):
        return "\n".join(self.L) + "\n"

def vr(b, n=4):
    return "v[%d:%d]" % (b, b + n - 1)
def sr(b, n=4):
    return "s[%d:%d]" % (b, b + n - 1)

WS_OF = 0
OF_BYTES = 2 * 96 * 128 * 1024
WS_WF = OF_BYTES
WF_BYTES = 2 * 40 * 128 * 1024
WS_BYTES = 268435456

SZ_X = 8 * 192 * 640 * 2
SZ_KV = 8 * 32 * 512 * 128 * 2
SZ_W = 640 * 4096 * 2
SZ_OUT = 8 * 192 * 1280 * 2

def srd(a, d, base, size):
    a("s_mov_b32 s%d, s%d" % (d, base))
    a("s_and_b32 s%d, s%d, 0xffff" % (d + 1, base + 1))
    a("s_mov_b32 s%d, 0x%x" % (d + 2, size))
    a("s_mov_b32 s%d, 0x00020000" % (d + 3))

def gen_k0(a):
    a.lab("wprep_kernel")
    a("s_cmp_ge_u32 s2, 256")
    a("s_cbranch_scc1 L_k0_end")
    a("s_lshr_b32 s3, s2, 7")
    a("s_and_b32 s4, s2, 127")
    a("s_mul_i32 s5, s3, 40")
    a("s_add_u32 s6, s0, s5")
    a("s_addc_u32 s7, s1, 0")
    a("s_load_dwordx2 s[8:9], s[6:7], 32")
    a("s_load_dwordx2 s[10:11], s[0:1], 96")
    a("v_lshrrev_b32 v1, 6, v0")
    a("v_and_b32 v0, 63, v0")
    a("s_nop 0")
    a("v_readfirstlane_b32 s12, v1")
    a("s_waitcnt lgkmcnt(0)")
    srd(a, 16, 8, SZ_W)
    srd(a, 20, 10, WS_BYTES)
    a("v_lshrrev_b32 v1, 4, v0")
    a("v_and_b32 v2, 15, v0")
    a("v_mul_u32_u24 v1, 5120, v1")
    a("v_lshl_add_u32 v1, v2, 4, v1")
    a("s_mul_i32 s13, s4, 40960")
    a("s_lshl_b32 s14, s12, 8")
    a("s_add_u32 s13, s13, s14")
    a("s_mul_i32 s15, s12, 8704")
    for P in range(8):
        a("s_add_u32 s24, s13, %d" % ((16 * (P // 4) + P % 4) * 1280))
        a("s_add_u32 m0, s15, %d" % (P * 1088))
        a("s_nop 0")
        a("buffer_load_dwordx4 v1, s[16:19], s24 offen lds")
    a("v_lshrrev_b32 v3, 5, v0")
    a("v_bfe_u32 v4, v0, 4, 1")
    a("v_bfe_u32 v5, v0, 2, 2")
    a("v_and_b32 v6, 3, v0")
    a("v_lshl_add_u32 v3, v3, 2, v5")
    a("v_mul_u32_u24 v3, 1088, v3")
    a("v_lshl_add_u32 v3, v4, 8, v3")
    a("v_lshl_add_u32 v3, v6, 3, v3")
    a("v_add_u32 v3, s15, v3")
    a("s_mul_i32 s25, s3, 40")
    a("s_lshl_b32 s26, s12, 3")
    a("s_add_u32 s25, s25, s26")
    a("s_lshl_b32 s25, s25, 7")
    a("s_add_u32 s25, s25, s4")
    a("s_lshl_b32 s25, s25, 10")
    a("s_add_u32 s25, s25, 0x%x" % WS_WF)
    a("v_lshlrev_b32 v7, 4, v0")
    a("s_waitcnt vmcnt(0)")
    for nt in range(8):
        a("ds_read_b64_tr_b16 %s, v3 offset:%d" % (vr(8 + 4 * nt, 2), nt * 32))
        a("ds_read_b64_tr_b16 %s, v3 offset:%d" % (vr(10 + 4 * nt, 2), nt * 32 + 512))
    a("s_waitcnt lgkmcnt(0)")
    for nt in range(8):
        a("buffer_store_dwordx4 %s, v7, s[20:23], s25 offen" % vr(8 + 4 * nt))
        a("s_add_u32 s25, s25, 0x%x" % (128 * 1024))
    a.lab("L_k0_end")
    a("s_endpgm")

SLOT = 34816
QPB = 29696
QP0 = 2 * SLOT
NQB = 3
LDS1 = 160 * 1024
V_ACC = 0
V_Q = 64
V_S = 96
V_NM = 112
V_KV = 128
V_KA0, V_KA1, V_VA, V_DK, V_L, V_T0, V_T1, V_T2 = 160, 161, 162, 163, 164, 165, 166, 167
V_FS = [64, 104]
V_XA0, V_XA1, V_WA, V_DQ = 144, 145, 146, 147
S_BLK, S_B, S_HP, S_W, S_HSEL, S_QT = 3, 4, 5, 6, 7, 44
S_X, S_K, S_V, S_WQ, S_WS = 20, 24, 28, 32, 40
S_D1, S_D2 = 48, 52
S_G1, S_G1S, S_G1A, S_L1, S_L1S = 56, 57, 58, 59, 60
S_G2, S_G2S, S_L2 = 61, 62, 63
S_T0, S_T1, S_T2, S_T3 = 64, 65, 66, 67
S_ROLE = 68
S_SC = 70

STAMPS = "--stamps" in sys.argv
_stamp_n = [0]
def stamp(a):
    if not STAMPS:
        return
    n = _stamp_n[0]; _stamp_n[0] += 1
    a("%s s[%d:%d]" % ("s_memrealtime" if "--rt" in sys.argv else "s_memtime", 72 + 2 * n, 73 + 2 * n))

def stamp_dump(a, S_W=6, tag="k1"):
    if not STAMPS:
        return
    n = _stamp_n[0]
    _stamp_n[0] = 0
    a("s_waitcnt lgkmcnt(0)")
    a("s_cmp_lg_u32 s2, 0")
    a("s_cbranch_scc1 L_sd_e_%s" % tag)
    if tag == "k1":
        a("s_and_b32 s64, s%d, 3" % S_W)
        a("s_cmp_lg_u32 s64, 0")
        a("s_cbranch_scc1 L_sd_e_%s" % tag)
    a("s_load_dwordx2 s[10:11], s[0:1], 88")
    a("s_waitcnt lgkmcnt(0)")
    srd(a, 12, 10, 256)
    a("s_lshl_b32 s64, s%d, %d" % (S_W, 4 if tag == "k1" else 6))
    a("v_mov_b32 v1, 0")
    for i in range(n):
        a("s_sub_u32 s65, s%d, s72" % (72 + 2 * i))
        a("v_mov_b32 v2, s65")
        a("buffer_store_dword v2, v1, s[12:15], s64 offen offset:%d" % (4 * i))
    a.lab("L_sd_e_%s" % tag)

TOUCH_STRIDE = 128
NTOUCH = 8
for x in sys.argv:
    if x.startswith("--touch="):
        TOUCH_STRIDE = int(x.split("=")[1])
    if x.startswith("--ntouch="):
        NTOUCH = int(x.split("=")[1])
TPACE = 1
NPRE = 2
WQF = ""
XF = ""
for x in sys.argv:
    if x.startswith("--wqf="):
        WQF = " " + x.split("=")[1].replace("+", " ")
    if x.startswith("--xf="):
        XF = " " + x.split("=")[1].replace("+", " ")
OSF = ""
for x in sys.argv:
    if x.startswith("--osf="):
        OSF = " " + x.split("=")[1].replace("+", " ")
TPER = 1
for x in sys.argv:
    if x.startswith("--tper="):
        TPER = int(x.split("=")[1])
XWT = "--noxwt" not in sys.argv
WOF = ""
for x in sys.argv:
    if x.startswith("--wof="):
        WOF = " " + x.split("=")[1].replace("+", " ")
WO_IT = 3
TSTART = 9
TF = " nt"
for x in sys.argv:
    if x.startswith("--woit="):
        WO_IT = int(x.split("=")[1])
    if x.startswith("--tstart="):
        TSTART = int(x.split("=")[1])
    if x.startswith("--tf="):
        TF = " " + x.split("=")[1].replace("+", " ")
KVF = ""
for x in sys.argv:
    if x.startswith("--kvf="):
        KVF = " " + x.split("=")[1].replace("+", " ")
PRIO = None
for x in sys.argv:
    if x.startswith("--prio="):
        PRIO = [int(c) for c in x.split("=")[1]]
for x in sys.argv:
    if x.startswith("--tpace="):
        TPACE = int(x.split("=")[1])
    if x.startswith("--npre="):
        NPRE = int(x.split("=")[1])
V_DW, V_WR, V_WST, V_TCH, V_WD = 148, 149, 150, 151, 152
S_WO = 36
S_WG, S_WL, S_WSO = 47, 45, 46
WTAIL = 4 * SLOT

def gen_k1(a):
    a.lab("attn_kernel")
    a("s_cmp_ge_u32 s2, 256")
    a("s_cbranch_scc1 L_k1_end")
    stamp(a)
    if "--wgt" in sys.argv:
        a("s_memrealtime s[100:101]")
    a("s_bfe_u32 s%d, s2, 0x10002" % S_BLK)
    a("s_lshr_b32 s%d, s2, 5" % S_B)
    a("s_and_b32 s%d, s2, 3" % S_HP)
    a("s_lshl_b32 s%d, s%d, 2" % (S_HP, S_HP))
    a("s_bfe_u32 s%d, s2, 0x20003" % S_T0)
    a("s_add_u32 s%d, s%d, s%d" % (S_HP, S_HP, S_T0))
    a("s_mul_i32 s%d, s%d, 40" % (S_T0, S_BLK))
    a("s_add_u32 s8, s0, s%d" % S_T0)
    a("s_addc_u32 s9, s1, 0")
    a("s_load_dwordx8 s[12:19], s[8:9], 0")
    a("s_load_dwordx2 s[10:11], s[0:1], 96")
    a("s_lshr_b32 s%d, s2, 7" % S_T1)
    a("s_mul_i32 s%d, s%d, 40" % (S_T0, S_T1))
    a("s_add_u32 s8, s0, s%d" % S_T0)
    a("s_addc_u32 s9, s1, 0")
    a("s_load_dwordx2 s[46:47], s[8:9], 32")
    a("v_lshrrev_b32 v1, 6, v0")
    a("v_and_b32 v0, 63, v0")
    a("s_nop 0")
    a("v_readfirstlane_b32 s%d, v1" % S_W)
    a("s_nop 3")
    a("s_cmp_ge_u32 s%d, 6" % S_W)
    a("s_cselect_b32 s%d, 1, 0" % S_HSEL)
    a("s_mul_i32 s%d, s%d, 6" % (S_T0, S_HSEL))
    a("s_sub_u32 s%d, s%d, s%d" % (S_QT, S_W, S_T0))
    a("s_lshr_b32 s%d, s%d, 2" % (S_ROLE, S_W))
    a("s_mov_b32 s%d, 0x3e0293ee" % S_SC)
    a("s_mov_b32 s%d, 0x3e0293ee" % (S_SC + 1))
    a("s_waitcnt lgkmcnt(0)")
    srd(a, S_X, 12, SZ_X)
    srd(a, S_K, 14, SZ_KV)
    srd(a, S_V, 16, SZ_KV)
    srd(a, S_WQ, 18, SZ_W)
    srd(a, S_WS, 10, WS_BYTES)
    srd(a, S_WO, 46, SZ_W)
    a("v_and_b32 v1, 31, v0")
    a("v_lshrrev_b32 v2, 5, v0")
    a("v_bfe_u32 v3, v0, 4, 1")
    a("v_bfe_u32 v4, v0, 2, 2")
    a("v_and_b32 v5, 3, v0")
    a("s_cmp_eq_u32 s%d, 0" % S_ROLE)
    for i in range(3):
        a("s_cselect_b32 s%d, s%d, s%d" % (S_D1 + i, S_X + i, S_WQ + i))
    a("s_mov_b32 s%d, 0x00020000" % (S_D1 + 3))
    a("s_mov_b32 s%d, 8192" % S_T0)
    a("s_cselect_b32 s%d, 20480, s%d" % (S_G1S, S_T0))
    a("s_cselect_b32 s%d, 64, 262144" % S_G1A)
    a("s_mov_b32 s%d, 1088" % S_T0)
    a("s_cselect_b32 s%d, 1024, s%d" % (S_L1S, S_T0))
    a("s_mul_i32 s%d, s%d, 192" % (S_T0, S_B))
    a("s_mul_i32 s%d, s%d, 48" % (S_T1, S_W))
    a("s_add_u32 s%d, s%d, s%d" % (S_T0, S_T0, S_T1))
    a("s_mul_i32 s%d, s%d, 1280" % (S_T0, S_T0))
    a("s_mul_i32 s%d, s%d, 3072" % (S_T1, S_W))
    a("s_add_u32 s%d, s%d, %d" % (S_T1, S_T1, QP0))
    a("s_sub_u32 s%d, s%d, 4" % (S_T2, S_W))
    a("s_lshl_b32 s%d, s%d, 16" % (S_T3, S_T2))
    a("s_lshl_b32 s98, s%d, 9" % S_HP)
    a("s_add_u32 s%d, s%d, s98" % (S_T3, S_T3))
    a("s_mul_i32 s%d, s%d, 4352" % (S_T2, S_T2))
    a("s_add_u32 s%d, s%d, %d" % (S_T2, S_T2, QP0 + 12288))
    a("s_cmp_eq_u32 s%d, 0" % S_ROLE)
    a("s_cselect_b32 s%d, s%d, s%d" % (S_G1, S_T0, S_T3))
    a("s_cselect_b32 s%d, s%d, s%d" % (S_L1, S_T1, S_T2))
    a("v_lshrrev_b32 v6, 2, v0")
    a("v_bfe_u32 v7, v0, 4, 2")
    a("v_xor_b32 v7, v5, v7")
    a("v_mul_u32_u24 v6, 1280, v6")
    a("v_lshl_add_u32 v6, v7, 4, v6")
    a("v_lshlrev_b32 v7, 15, v2")
    a("v_lshl_add_u32 v7, v1, 4, v7")
    a("s_cselect_b64 vcc, -1, 0")
    a("v_cndmask_b32 v%d, v7, v6, vcc" % V_DQ)
    a("s_sub_u32 s%d, s%d, 8" % (S_T0, S_W))
    a("s_and_b32 s%d, s%d, 1" % (S_T1, S_T0))
    a("s_lshl_b32 s%d, s%d, 5" % (S_T2, S_B))
    a("s_lshl_b32 s%d, s%d, 1" % (S_T3, S_HP))
    a("s_add_u32 s%d, s%d, s%d" % (S_T2, S_T2, S_T3))
    a("s_add_u32 s%d, s%d, s%d" % (S_T2, S_T2, S_T1))
    a("s_lshl_b32 s%d, s%d, 17" % (S_G2, S_T2))
    a("s_mul_i32 s%d, s%d, 8704" % (S_L2, S_T0))
    a("s_and_b32 s%d, s2, 127" % S_T1)
    a("s_mul_i32 s%d, s%d, 40960" % (S_WG, S_T1))
    a("s_lshl_b32 s%d, s%d, 8" % (S_T2, S_T0))
    a("s_add_u32 s%d, s%d, s%d" % (S_WG, S_WG, S_T2))
    a("s_lshr_b32 s%d, s2, 7" % S_T2)
    a("s_lshl_b32 s%d, s%d, 10" % (S_T2, S_T2))
    a("s_add_u32 s%d, s%d, s%d" % (S_T2, S_T2, S_T1))
    a("s_mul_i32 s%d, s%d, 5120" % (S_T2, S_T2))
    a("s_add_u32 s%d, s%d, 0x%x" % (S_WSO, S_T2, WS_WF))
    a("s_lshl_b32 s%d, s%d, 3" % (S_WL, S_T0))
    a("s_cmp_lt_u32 s%d, 10" % S_W)
    for i in range(3):
        a("s_cselect_b32 s%d, s%d, s%d" % (S_D2 + i, S_K + i, S_V + i))
    a("s_mov_b32 s%d, 0x00020000" % (S_D2 + 3))
    a("v_lshrrev_b32 v6, 4, v0")
    a("v_and_b32 v7, 15, v0")
    a("v_xor_b32 v8, v7, v6")
    a("v_lshlrev_b32 v8, 4, v8")
    a("v_lshl_add_u32 v8, v6, 8, v8")
    a("v_lshlrev_b32 v7, 4, v7")
    a("v_mul_u32_u24 v9, 5120, v6")
    a("v_add_u32 v%d, v9, v7" % V_DW)
    a("v_lshl_add_u32 v7, v6, 10, v7")
    a("s_cselect_b64 vcc, -1, 0")
    a("v_cndmask_b32 v%d, v7, v8, vcc" % V_DK)
    a("v_mul_u32_u24 v%d, %d, v0" % (V_TCH, TOUCH_STRIDE))

    r2 = []
    def r2_wait_n(tag):
        idx = max(i for i, t in enumerate(r2) if t == tag)
        return len(r2) - 1 - idx

    def qp_dma(stage):
        buf = stage % NQB
        lab = "L_qd_%d" % stage
        a("s_cmp_ge_u32 s%d, 2" % S_ROLE)
        a("s_cbranch_scc1 %s_e" % lab)
        a("s_mov_b32 s%d, s%d" % (S_T0, S_G1))
        a("s_add_u32 s%d, s%d, %d" % (S_T1, S_L1, buf * QPB))
        a("s_cmp_eq_u32 s%d, 0" % S_ROLE)
        a("s_cbranch_scc0 %s_w" % lab)
        for k in range(3):
            a("s_mov_b32 m0, s%d" % S_T1)
            a("s_nop 0")
            a("buffer_load_dwordx4 v%d, %s, s%d offen%s lds" % (V_DQ, sr(S_D1), S_T0, XF))
            if k < 2:
                a("s_add_u32 s%d, s%d, s%d" % (S_T0, S_T0, S_G1S))
                a("s_add_u32 s%d, s%d, s%d" % (S_T1, S_T1, S_L1S))
        a("s_branch %s_x" % lab)
        a.lab(lab + "_w")
        for k in range(4):
            a("s_mov_b32 m0, s%d" % S_T1)
            a("s_nop 0")
            a("buffer_load_dwordx4 v%d, %s, s%d offen%s lds" % (V_DQ, sr(S_D1), S_T0, WQF))
            if k < 3:
                a("s_add_u32 s%d, s%d, s%d" % (S_T0, S_T0, S_G1S))
                a("s_add_u32 s%d, s%d, s%d" % (S_T1, S_T1, S_L1S))
        a.lab(lab + "_x")
        a("s_add_u32 s%d, s%d, s%d" % (S_G1, S_G1, S_G1A))
        a.lab(lab + "_e")

    def r2_begin(tag):
        a("s_cmp_lt_u32 s%d, 2" % S_ROLE)
        a("s_cbranch_scc1 L_r2_%s" % tag)
    def r2_end(tag):
        a.lab("L_r2_%s" % tag)

    def kv_dma(stage, tag):
        slot = stage % 4
        lab = "L_kd_%s" % tag
        r2_begin(lab)
        a("s_cmp_lt_u32 s%d, 10" % S_W)
        a("s_cbranch_scc0 %s_v" % lab)
        for P in range(8):
            a("s_add_u32 s%d, s%d, %d" % (S_T0, S_G2, stage * 8192 + P * 1024))
            a("s_add_u32 m0, s%d, %d" % (S_L2, slot * SLOT + P * 1088))
            a("s_nop 0")
            a("buffer_load_dwordx4 v%d, %s, s%d offen%s lds" % (V_DK, sr(S_D2), S_T0, KVF))
        a("s_branch L_r2_%s" % lab)
        a.lab(lab + "_v")
        for P in range(8):
            a("s_add_u32 s%d, s%d, %d" % (S_T0, S_G2, stage * 8192 + (16 * (P // 4) + P % 4) * 256))
            a("s_add_u32 m0, s%d, %d" % (S_L2, slot * SLOT + P * 1088))
            a("s_nop 0")
            a("buffer_load_dwordx4 v%d, %s, s%d offen%s lds" % (V_DK, sr(S_D2), S_T0, KVF))
        r2_end(lab)
        r2.extend(["kv%d" % stage] * 8)

    def touch(stage, tag):
        n = 8192 // (64 * TOUCH_STRIDE)
        r2_begin("t" + tag)
        for k in range(n):
            a("s_add_u32 s%d, s%d, %d" % (S_T0, S_G2, stage * 8192 + k * 64 * TOUCH_STRIDE))
            a("buffer_load_dword v%d, v%d, %s, s%d offen%s" % (V_T0, V_TCH, sr(S_D2), S_T0, TF))
            r2.append("touch")
        r2_end("t" + tag)

    def wo_dma(tile4):
        for P in range(8):
            if tile4:
                a("s_add_u32 s%d, s%d, %d" % (S_T0, S_WG, 1024 + (16 * (P // 4) + P % 4) * 1280))
                a("s_mov_b32 m0, %d" % (WTAIL + P * 1088))
            else:
                a("s_add_u32 s%d, s%d, %d" % (S_T0, S_WG, (16 * (P // 4) + P % 4) * 1280))
                a("s_add_u32 m0, s%d, %d" % (S_L2, P * 1088))
            a("s_nop 0")
            a("buffer_load_dwordx4 v%d, %s, s%d offen%s lds" % (V_T0, sr(S_WO), S_T0, WOF))

    def wo_batch(bi, tile4):
        for q in range(2):
            nt = 2 * bi + q
            base = WTAIL if tile4 else 0
            a("ds_read_b64_tr_b16 %s, v%d offset:%d" % (vr(V_WD + 4 * q, 2), V_WR + (1 if tile4 else 0) * 0, nt * 32))
            a("ds_read_b64_tr_b16 %s, v%d offset:%d" % (vr(V_WD + 4 * q + 2, 2), V_WR, nt * 32 + 512))
        a("s_waitcnt lgkmcnt(0)")
        for q in range(2):
            nt = 2 * bi + q
            a("s_add_u32 s%d, s%d, %d" % (S_T0, S_WSO, (nt + (32 if tile4 else 0)) * 131072))
            a("buffer_store_dwordx4 %s, v%d, %s, s%d offen" % (vr(V_WD + 4 * q), V_WST, sr(S_WS), S_T0))

    def role_wait(tag, n0, n1, n2):
        lab = "L_rw_%s" % tag
        vals = [n0, n1, n2]
        for r in range(3):
            if vals[r] is None:
                continue
            a("s_cmp_lg_u32 s%d, %d" % (S_ROLE, r))
            a("s_cbranch_scc1 %s_%d" % (lab, r))
            a("s_waitcnt vmcnt(%d)" % vals[r])
            a.lab("%s_%d" % (lab, r))

    for st in range(3):
        qp_dma(st)
    a("s_barrier")
    if XWT:
        r2_begin("xwt")
        a("s_sub_u32 s%d, s%d, 8" % (S_T3, S_W))
        a("s_bfe_u32 s%d, s2, 0x20003" % S_T0)
        a("s_mul_i32 s%d, s%d, 48" % (S_T0, S_T0))
        a("s_mul_i32 s%d, s%d, 192" % (S_T1, S_B))
        a("s_add_u32 s%d, s%d, s%d" % (S_T0, S_T0, S_T1))
        a("s_mul_i32 s%d, s%d, 1280" % (S_T0, S_T0))
        a("s_lshl_b32 s%d, s%d, 7" % (S_T1, S_T3))
        a("s_add_u32 s%d, s%d, s%d" % (S_T0, S_T0, S_T1))
        a("v_min_u32 v6, 47, v0")
        a("v_mul_u32_u24 v6, 1280, v6")
        a("buffer_load_dword v%d, v6, %s, s%d offen" % (V_T0, sr(S_X), S_T0))
        a("buffer_load_dword v%d, v6, %s, s%d offen offset:512" % (V_T0, sr(S_X), S_T0))
        a("s_cmp_ge_u32 s%d, 2" % S_T3)
        a("s_cbranch_scc1 L_xwt_skip")
        a("buffer_load_dword v%d, v6, %s, s%d offen offset:1024" % (V_T0, sr(S_X), S_T0))
        a.lab("L_xwt_skip")
        a("s_mul_i32 s%d, s%d, 80" % (S_T0, S_B))
        a("s_lshl_b32 s%d, s%d, 4" % (S_T1, S_T3))
        a("s_add_u32 s%d, s%d, s%d" % (S_T0, S_T0, S_T1))
        a("s_lshl_b32 s%d, s%d, 13" % (S_T0, S_T0))
        a("s_lshl_b32 s%d, s%d, 9" % (S_T1, S_HP))
        a("s_add_u32 s%d, s%d, s%d" % (S_T0, S_T0, S_T1))
        a("v_lshrrev_b32 v6, 2, v0")
        a("v_lshlrev_b32 v6, 13, v6")
        a("v_lshl_add_u32 v6, v5, 7, v6")
        a("buffer_load_dword v%d, v6, %s, s%d offen%s" % (V_T0, sr(S_WQ), S_T0, WQF))
        a("s_cmp_lg_u32 s%d, 0" % S_T3)
        a("s_cbranch_scc1 L_xwt_skip2")
        a("s_add_u32 s%d, s%d, %d" % (S_T0, S_T0, 64 * 8192))
        a("buffer_load_dword v%d, v6, %s, s%d offen%s" % (V_T0, sr(S_WQ), S_T0, WQF))
        a.lab("L_xwt_skip2")
        r2_end("xwt")
    kv_dma(0, "p0")
    kv_dma(1, "p1")
    tq = list(range(2, 2 + NTOUCH))
    a("s_lshl_b32 s%d, s%d, 5" % (S_T0, S_QT))
    a("v_add_u32 v6, s%d, v1" % S_T0)
    a("v_bfe_u32 v7, v6, 2, 2")
    a("v_xor_b32 v8, v2, v7")
    a("v_lshlrev_b32 v6, 6, v6")
    a("v_lshl_add_u32 v%d, v8, 4, v6" % V_XA0)
    a("v_xor_b32 v8, 2, v8")
    a("v_lshl_add_u32 v%d, v8, 4, v6" % V_XA1)
    a("v_add_u32 v%d, %d, v%d" % (V_XA0, QP0, V_XA0))
    a("v_add_u32 v%d, %d, v%d" % (V_XA1, QP0, V_XA1))
    a("v_lshl_add_u32 v6, v2, 2, v4")
    a("v_mul_u32_u24 v6, 1088, v6")
    a("v_lshl_add_u32 v6, v3, 5, v6")
    a("v_and_b32 v7, 1, v5")
    a("v_lshl_add_u32 v6, v7, 4, v6")
    a("v_lshrrev_b32 v7, 1, v5")
    a("v_lshl_add_u32 v6, v7, 3, v6")
    a("s_lshl_b32 s%d, s%d, 8" % (S_T0, S_HSEL))
    a("s_add_u32 s%d, s%d, %d" % (S_T0, S_T0, QP0 + 12288))
    a("v_add_u32 v%d, s%d, v6" % (V_WA, S_T0))
    a("v_lshrrev_b32 v6, 2, v1")
    a("v_mul_u32_u24 v6, 1088, v6")
    a("v_and_b32 v7, 3, v1")
    a("v_lshl_add_u32 v6, v7, 8, v6")
    a("v_xor_b32 v8, v2, v7")
    a("s_mul_i32 s%d, s%d, 8704" % (S_T0, S_HSEL))
    a("v_add_u32 v6, s%d, v6" % S_T0)
    a("v_lshl_add_u32 v%d, v8, 4, v6" % V_KA0)
    a("v_xor_b32 v8, 2, v8")
    a("v_lshl_add_u32 v%d, v8, 4, v6" % V_KA1)
    a("v_mul_u32_u24 v6, 1088, v4")
    a("v_lshl_add_u32 v6, v2, 8, v6")
    a("v_lshl_add_u32 v6, v3, 5, v6")
    a("v_lshl_add_u32 v6, v5, 3, v6")
    a("s_add_u32 s%d, s%d, 17408" % (S_T0, S_T0))
    a("v_add_u32 v%d, s%d, v6" % (V_VA, S_T0))
    a("v_lshl_add_u32 v6, v2, 2, v4")
    a("v_mul_u32_u24 v6, 1088, v6")
    a("v_lshl_add_u32 v6, v3, 8, v6")
    a("v_lshl_add_u32 v6, v5, 3, v6")
    a("v_add_u32 v%d, s%d, v6" % (V_WR, S_L2))
    a("v_lshlrev_b32 v%d, 4, v0" % V_WST)
    a("v_mov_b32 v%d, v0" % V_T2)

    def qp_reads(stage, fs):
        base = V_FS[fs]
        L = []
        for ks in range(2):
            L.append("ds_read_b128 %s, v%d" % (vr(base + 4 * ks), V_XA0 + ks))
            for t in range(4):
                d = base + 8 + (ks * 4 + t) * 4
                for u in range(2):
                    L.append("ds_read_b64_tr_b16 %s, v%d offset:%d" % (vr(d + 2 * u, 2), V_WA, ks * 8704 + u * 512 + t * 64))
        return L

    def qp_addr_adv(stage_from):
        d = QPB if (stage_from % NQB) != NQB - 1 else -(NQB - 1) * QPB
        for r in (V_XA0, V_XA1, V_WA):
            if d > 0:
                a("v_add_u32 v%d, %d, v%d" % (r, d, r))
            else:
                a("v_subrev_u32 v%d, %d, v%d" % (r, -d, r))

    role_wait("pre", 6, 8, None)
    a("s_barrier")
    stamp(a)
    for ins in qp_reads(0, 0):
        a(ins)
    qp_addr_adv(0)
    NQ = 20
    for j in range(NQ):
        a.c("---- qproj iter %d" % j)
        if j in (5, 10, 15):
            stamp(a)
        if j + 1 <= NQ - 1:
            rem = 1 if j + 2 <= NQ - 1 else 0
            role_wait("q%d" % j, 3 * rem, 4 * rem, None)
        a("s_waitcnt lgkmcnt(0)")
        a("s_barrier")
        if j + 3 < NQ:
            qp_dma(j + 3)
        if tq and j >= TSTART and (j - TSTART) % TPACE == 0:
            for _i in range(TPER):
                if tq: touch(tq.pop(0), "q%d_%d" % (j, _i))
        if j == 19:
            kv_dma(2, "q19a")
            kv_dma(3, "q19b")
        a("s_waitcnt lgkmcnt(0)")
        fs = j & 1
        base = V_FS[fs]
        rd = qp_reads(j + 1, fs ^ 1) if j + 1 < NQ else []
        mf = []
        for ks in range(2):
            for t in range(4):
                c = "0" if (j == 0 and ks == 0) else vr(V_ACC + 16 * t, 16)
                mf.append("v_mfma_f32_32x32x16_bf16 %s, %s, %s, %s" % (
                    vr(V_ACC + 16 * t, 16), vr(base + 8 + (ks * 4 + t) * 4), vr(base + 4 * ks), c))
        ri = 0
        for m in range(8):
            a(mf[m])
            n = 3 if m < 2 else 2
            for _ in range(n):
                if ri < len(rd):
                    a(rd[ri]); ri += 1
        while ri < len(rd):
            a(rd[ri]); ri += 1
        if j + 1 < NQ:
            qp_addr_adv(j + 1)
    a.c("---- q convert")
    stamp(a)
    role_wait("a_pre2", None, None, r2_wait_n("kv0"))
    a("s_nop 15")
    for t in range(4):
        for p in range(8):
            i0 = V_ACC + 16 * t + 2 * p
            a("v_pk_mul_f32 %s, %s, %s" % (vr(i0, 2), vr(i0, 2), sr(S_SC, 2)))
            a("v_cvt_pk_bf16_f32 v%d, v%d, v%d" % (V_Q + t * 8 + p, i0, i0 + 1))
    a("v_mov_b32 v%d, 0" % V_L)

    def k_reads(stage):
        L = []
        for s in range(8):
            L.append("ds_read_b128 %s, v%d offset:%d" % (vr(V_KV + 4 * s), V_KA0 + (s & 1), (s >> 1) * 64))
        return L
    def v_reads():
        L = []
        for sl in range(2):
            for dt in range(4):
                f = sl * 4 + dt
                for u in range(2):
                    L.append("ds_read_b64_tr_b16 %s, v%d offset:%d" % (vr(V_KV + 4 * f + 2 * u, 2), V_VA, sl * 4352 + u * 512 + dt * 64))
        return L
    def slot_adv(regs, stage_from):
        d = SLOT if (stage_from % 4) != 3 else -3 * SLOT
        for r in regs:
            if d > 0:
                a("v_add_u32 v%d, %d, v%d" % (r, d, r))
            else:
                a("v_subrev_u32 v%d, %d, v%d" % (r, -d, r))

    a("s_barrier")
    for ins in k_reads(0):
        a(ins)
    slot_adv((V_KA0, V_KA1), 0)
    NT = 16
    rare = []
    for t in range(NT):
        a.c("---- attn stage %d" % t)
        if t in (0, 1, 4, 8, 12):
            stamp(a)
        if t + 1 < NT:
            role_wait("a%d" % t, None, None, r2_wait_n("kv%d" % (t + 1)))
        a("s_barrier")
        if t >= 1 and t + 3 < NT:
            kv_dma(t + 3, "a%d" % t)
        if t == 13:
            a("v_lshrrev_b32 v%d, 4, v%d" % (V_T0, V_T2))
            a("v_and_b32 v%d, 15, v%d" % (V_T1, V_T2))
            a("v_mul_u32_u24 v%d, 5120, v%d" % (V_T0, V_T0))
            a("v_lshl_add_u32 v%d, v%d, 4, v%d" % (V_T0, V_T1, V_T0))
            r2_begin("wo")
            a("s_cmp_lg_u32 s%d, 8" % S_W)
            a("s_cbranch_scc1 L_wo4_skip")
            wo_dma(True)
            a.lab("L_wo4_skip")
            wo_dma(False)
            r2_end("wo")
            r2.extend(["wo"] * 8)
        if PRIO: a("s_setprio %d" % PRIO[0])
        a("s_waitcnt lgkmcnt(0)")
        vrd = v_reads()
        S = V_S
        for s in range(8):
            c = ("0" if t == 0 else vr(V_NM, 16)) if s == 0 else vr(S, 16)
            a("v_mfma_f32_32x32x16_bf16 %s, %s, %s, %s" % (vr(S, 16), vr(V_KV + 4 * s), vr(V_Q + 4 * s), c))
            if s >= 1:
                a(vrd[2 * (s - 1)]); a(vrd[2 * (s - 1) + 1])
        a(vrd[14]); a(vrd[15])
        slot_adv((V_VA,), t)
        if PRIO: a("s_setprio %d" % PRIO[1])
        a("s_nop 7")
        a("s_nop 1")
        T0, T1 = V_T0, V_T1
        a("v_max3_f32 v%d, v%d, v%d, v%d" % (T0, S, S + 1, S + 2))
        a("v_max3_f32 v%d, v%d, v%d, v%d" % (T1, S + 3, S + 4, S + 5))
        a("v_max3_f32 v%d, v%d, v%d, v%d" % (T0, T0, S + 6, S + 7))
        a("v_max3_f32 v%d, v%d, v%d, v%d" % (T1, T1, S + 8, S + 9))
        a("v_max3_f32 v%d, v%d, v%d, v%d" % (T0, T0, S + 10, S + 11))
        a("v_max3_f32 v%d, v%d, v%d, v%d" % (T1, T1, S + 12, S + 13))
        a("v_max3_f32 v%d, v%d, v%d, v%d" % (T0, T0, S + 14, S + 15))
        a("v_max_f32 v%d, v%d, v%d" % (T0, T0, T1))
        if t == 0:
            a("v_mov_b32 v%d, v%d" % (T1, T0))
            a("s_nop 1")
            a("v_permlane32_swap_b32 v%d, v%d" % (T0, T1))
            a("s_nop 1")
            a("v_max_f32 v%d, v%d, v%d" % (T0, T0, T1))
            for i in range(16):
                a("v_sub_f32 v%d, v%d, v%d" % (S + i, S + i, T0))
            for i in range(16):
                a("v_sub_f32 v%d, 0, v%d" % (V_NM + i, T0))
        else:
            a("v_cmp_lt_f32 vcc, 0x41000000, v%d" % T0)
            a("s_cbranch_vccnz L_rare_%d" % t)
            a.lab("L_back_%d" % t)
            R = []
            R.append("L_rare_%d:" % t)
            R.append("    v_mov_b32 v%d, v%d" % (T1, T0))
            R.append("    s_nop 1")
            R.append("    v_permlane32_swap_b32 v%d, v%d" % (T0, T1))
            R.append("    s_nop 1")
            R.append("    v_max_f32 v%d, v%d, v%d" % (T0, T0, T1))
            R.append("    v_max_f32 v%d, 0, v%d" % (T0, T0))
            R.append("    v_exp_f32 v%d, -v%d" % (T1, T0))
            for i in range(16):
                R.append("    v_sub_f32 v%d, v%d, v%d" % (S + i, S + i, T0))
            for i in range(16):
                R.append("    v_sub_f32 v%d, v%d, v%d" % (V_NM + i, V_NM + i, T0))
            for i in range(64):
                R.append("    v_mul_f32 v%d, v%d, v%d" % (V_ACC + i, V_ACC + i, T1))
            R.append("    v_mul_f32 v%d, v%d, v%d" % (V_L, V_L, T1))
            R.append("    s_nop 1")
            R.append("    s_branch L_back_%d" % t)
            rare += R
        for i in range(16):
            a("v_exp_f32 v%d, v%d" % (S + i, S + i))
        for i in range(16):
            a("v_add_f32 v%d, v%d, v%d" % (V_L, V_L, S + i))
        for p in range(4):
            a("v_cvt_pk_bf16_f32 v%d, v%d, v%d" % (S + p, S + 2 * p, S + 2 * p + 1))
        for p in range(4):
            a("v_cvt_pk_bf16_f32 v%d, v%d, v%d" % (S + 8 + p, S + 8 + 2 * p, S + 8 + 2 * p + 1))
        if PRIO: a("s_setprio %d" % PRIO[2])
        a("s_waitcnt lgkmcnt(0)")
        krd = k_reads(t + 1) if t + 1 < NT else []
        for f in range(8):
            sl, dt = f // 4, f % 4
            c = "0" if (t == 0 and sl == 0) else vr(V_ACC + 16 * dt, 16)
            a("v_mfma_f32_32x32x16_bf16 %s, %s, %s, %s" % (vr(V_ACC + 16 * dt, 16), vr(V_KV + 4 * f), vr(S + 8 * sl), c))
            if f >= 1 and krd:
                a(krd[f - 1])
        if krd:
            a(krd[7])
            slot_adv((V_KA0, V_KA1), t + 1)
    a.c("---- epilogue")
    stamp(a)
    T0, T1 = V_T0, V_T1
    a("v_mov_b32 v%d, v%d" % (T1, V_L))
    a("s_nop 1")
    a("v_permlane32_swap_b32 v%d, v%d" % (V_L, T1))
    a("s_nop 1")
    a("v_add_f32 v%d, v%d, v%d" % (V_L, V_L, T1))
    a("v_rcp_f32 v%d, v%d" % (V_L, V_L))
    a("s_lshl_b32 s%d, s%d, 4" % (S_T0, S_BLK))
    a("s_lshl_b32 s%d, s%d, 1" % (S_T1, S_B))
    a("s_add_u32 s%d, s%d, s%d" % (S_T0, S_T0, S_T1))
    a("s_cmp_ge_u32 s%d, 3" % S_QT)
    a("s_cselect_b32 s%d, 1, 0" % S_T1)
    a("s_add_u32 s%d, s%d, s%d" % (S_T0, S_T0, S_T1))
    a("s_mul_i32 s%d, s%d, 3" % (S_T1, S_T1))
    a("s_sub_u32 s%d, s%d, s%d" % (S_T2, S_QT, S_T1))
    a("s_lshl_b32 s%d, s%d, 7" % (S_T0, S_T0))
    a("s_lshl_b32 s%d, s%d, 1" % (S_T1, S_HP))
    a("s_add_u32 s%d, s%d, s%d" % (S_T1, S_T1, S_HSEL))
    a("s_lshl_b32 s%d, s%d, 2" % (S_T1, S_T1))
    a("s_add_u32 s%d, s%d, s%d" % (S_T0, S_T0, S_T1))
    a("s_mul_i32 s%d, s%d, 6144" % (S_T0, S_T0))
    a("s_lshl_b32 s%d, s%d, 11" % (S_T2, S_T2))
    a("s_add_u32 s%d, s%d, s%d" % (S_T0, S_T0, S_T2))
    ln = V_T2
    a("v_and_b32 v%d, 15, v%d" % (T0, ln))
    a("v_bfe_u32 v%d, v%d, 4, 1" % (T1, ln))
    a("v_lshlrev_b32 v%d, 10, v%d" % (T1, T1))
    a("v_lshl_add_u32 v%d, v%d, 4, v%d" % (T0, T0, T1))
    a("v_lshrrev_b32 v%d, 5, v%d" % (T1, ln))
    a("v_lshl_add_u32 v%d, v%d, 8, v%d" % (T0, T1, T0))
    a("s_nop 7")
    for dt in range(4):
        for half in range(2):
            b0 = V_ACC + 16 * dt + 8 * half
            d = V_Q + (dt * 2 + half) * 4
            for p in range(4):
                a("v_mul_f32 v%d, v%d, v%d" % (b0 + 2 * p, b0 + 2 * p, V_L))
                a("v_mul_f32 v%d, v%d, v%d" % (b0 + 2 * p + 1, b0 + 2 * p + 1, V_L))
                a("v_cvt_pk_bf16_f32 v%d, v%d, v%d" % (d + p, b0 + 2 * p, b0 + 2 * p + 1))
            if "--noostore" not in sys.argv:
                a("buffer_store_dwordx4 %s, v%d, %s, s%d offen offset:%d%s" % (vr(d), T0, sr(S_WS), S_T0, half * 512, OSF))
        a("s_add_u32 s%d, s%d, 6144" % (S_T0, S_T0))
    r2_begin("wofin")
    ln = V_T2
    a("v_lshrrev_b32 v1, 5, v%d" % ln)
    a("v_bfe_u32 v2, v%d, 4, 1" % ln)
    a("v_bfe_u32 v3, v%d, 2, 2" % ln)
    a("v_and_b32 v4, 3, v%d" % ln)
    a("v_lshl_add_u32 v1, v1, 2, v3")
    a("v_mul_u32_u24 v1, 1088, v1")
    a("v_lshl_add_u32 v1, v2, 8, v1")
    a("v_lshl_add_u32 v1, v4, 3, v1")
    a("v_add_u32 v2, s%d, v1" % S_L2)
    a("v_add_u32 v3, %d, v1" % WTAIL)
    a("v_lshlrev_b32 v4, 4, v%d" % ln)
    a("s_waitcnt vmcnt(%d)" % (0 if "--noostore" in sys.argv else 8))
    for tile4 in (False, True):
        if tile4:
            a("s_cmp_lg_u32 s%d, 8" % S_W)
            a("s_cbranch_scc1 L_r2_wofin")
        for nt in range(8):
            a("ds_read_b64_tr_b16 %s, v%d offset:%d" % (vr(8 + 4 * nt, 2), 3 if tile4 else 2, nt * 32))
            a("ds_read_b64_tr_b16 %s, v%d offset:%d" % (vr(10 + 4 * nt, 2), 3 if tile4 else 2, nt * 32 + 512))
        a("s_waitcnt lgkmcnt(0)")
        for nt in range(8):
            if tile4:
                n_ = 32 + nt
                a("s_add_u32 s%d, s%d, %d" % (S_T0, S_WSO, (n_ // 5) * 128 * 5120 + (n_ % 5) * 1024))
            else:
                a("s_add_u32 s%d, s%d, %d" % (S_T1, S_WL, nt))
                a("s_mul_i32 s%d, s%d, 52" % (S_T2, S_T1))
                a("s_lshr_b32 s%d, s%d, 8" % (S_T2, S_T2))
                a("s_mul_i32 s%d, s%d, 5" % (S_T3, S_T2))
                a("s_sub_u32 s%d, s%d, s%d" % (S_T1, S_T1, S_T3))
                a("s_mul_i32 s%d, s%d, %d" % (S_T2, S_T2, 128 * 5120))
                a("s_lshl_b32 s%d, s%d, 10" % (S_T1, S_T1))
                a("s_add_u32 s%d, s%d, s%d" % (S_T0, S_WSO, S_T2))
                a("s_add_u32 s%d, s%d, s%d" % (S_T0, S_T0, S_T1))
            a("buffer_store_dwordx4 %s, v4, %s, s%d offen%s" % (vr(8 + 4 * nt), sr(S_WS), S_T0, OSF))
        a("s_nop 1")
    r2_end("wofin")
    if "--wgt" in sys.argv:
        a("s_waitcnt vmcnt(0)")
        a("s_memrealtime s[98:99]")
        a("s_waitcnt lgkmcnt(0)")
        a("s_cmp_lg_u32 s%d, 0" % S_W)
        a("s_cbranch_scc1 L_wgt_e")
        a("s_lshl_b32 s64, s2, 3")
        a("s_add_u32 s64, s64, 0x4000000")
        a("v_mov_b32 v1, 0")
        a("v_mov_b32 v2, s100")
        a("v_mov_b32 v3, s98")
        a("buffer_store_dwordx2 v[2:3], v1, %s, s64 offen" % sr(S_WS))
        a.lab("L_wgt_e")
    stamp(a)
    stamp_dump(a)
    a.lab("L_k1_end")
    a("s_endpgm")
    a.L += rare

def gen_k2(a):
    a.lab("oproj_kernel")
    a("s_cmp_ge_u32 s2, 256")
    a("s_cbranch_scc1 L_k2_end")
    stamp(a)
    a("s_load_dwordx2 s[8:9], s[0:1], 80")
    a("s_load_dwordx2 s[10:11], s[0:1], 96")
    a("s_and_b32 s3, s2, 7")
    a("s_lshr_b32 s4, s2, 3")
    a("s_and_b32 s5, s4, 7")
    a("s_lshr_b32 s4, s4, 3")
    a("s_lshl_b32 s3, s3, 2")
    a("s_add_u32 s4, s4, s3")
    a("s_lshr_b32 s3, s4, 4")
    a("s_and_b32 s4, s4, 15")
    if "--k2same" in sys.argv:
        a("s_mov_b32 s42, s3"); a("s_mov_b32 s43, s4"); a("s_mov_b32 s44, s5")
    a("v_lshrrev_b32 v1, 6, v0")
    a("v_and_b32 v0, 63, v0")
    a("s_nop 0")
    a("v_readfirstlane_b32 s6, v1")
    a("s_waitcnt lgkmcnt(0)")
    srd(a, 12, 8, SZ_OUT)
    srd(a, 16, 10, WS_BYTES)
    a("v_lshlrev_b32 v1, 4, v0")
    if "--k2same" in sys.argv:
        a("s_mov_b32 s3, 0"); a("s_mov_b32 s4, 0"); a("s_mov_b32 s5, 0")
    a("s_lshl_b32 s20, s3, 4")
    a("s_add_u32 s20, s20, s4")
    a("s_lshl_b32 s20, s20, 7")
    a("s_lshl_b32 s21, s6, 5")
    a("s_add_u32 s20, s20, s21")
    a("s_mul_i32 s24, s20, 6144")
    a("s_add_u32 s25, s24, 4096")
    a("s_lshl_b32 s22, s3, 3")
    a("s_add_u32 s22, s22, s5")
    a("s_lshl_b32 s22, s22, 7")
    a("s_add_u32 s22, s22, s21")
    a("s_mul_i32 s26, s22, 5120")
    a("s_add_u32 s26, s26, 0x%x" % WS_WF)
    a("s_add_u32 s27, s26, 4096")
    ACC = 0
    FB = 8
    NB = 5
    def ar(b, n=4):
        return "a[%d:%d]" % (b, b + n - 1)
    NK = 32
    def loads(ks):
        b = FB + 44 * (ks % NB)
        L = []
        for f in range(6):
            L.append("buffer_load_dwordx4 %s, v1, s[16:19], s%d offen offset:%d" % (vr(b + 4 * f), 24 + f // 4, (f % 4) * 1024))
        for f in range(5):
            L.append("buffer_load_dwordx4 %s, v1, s[16:19], s%d offen offset:%d" % (vr(b + 24 + 4 * f), 26 + f // 4, (f % 4) * 1024))
        if "--k2noload" in sys.argv and ks >= 4:
            L = []
        L.append("s_add_u32 s24, s24, 6144")
        L.append("s_add_u32 s25, s25, 6144")
        L.append("s_add_u32 s26, s26, 5120")
        L.append("s_add_u32 s27, s27, 5120")
        return L
    for ks in range(NB - 1):
        for ins in loads(ks):
            a(ins)
    for ks in range(NK):
        nxt = ks + NB - 1
        ld = loads(nxt) if nxt < NK else []
        outstanding_after = min(NK - 1, ks + NB - 2) - ks
        a("s_waitcnt vmcnt(%d)" % (11 * outstanding_after))
        if ks in (0, 1, 8, 16, 24):
            stamp(a)
        b = FB + 44 * (ks % NB)
        li = 0
        m = 0
        for j in range(5):
            for i in range(6):
                if "--k2nomfma" not in sys.argv:
                    a("v_mfma_f32_16x16x32_bf16 %s, %s, %s, %s" % (ar(ACC + 4 * (j * 6 + i)), vr(b + 24 + 4 * j), vr(b + 4 * i), "0" if ks == 0 else ar(ACC + 4 * (j * 6 + i))))
                m += 1
                if li < len(ld) and m >= 2:
                    a(ld[li]); li += 1
        while li < len(ld):
            a(ld[li]); li += 1
    stamp(a)
    a("s_nop 15")
    a("s_mul_i32 s36, s6, 30720")
    a("v_add_u32 v2, s36, v1")
    for tl in range(30):
        a("ds_write_b128 v2, %s offset:%d" % (ar(ACC + 4 * tl), tl * 1024))
    a("s_lshl_b32 s36, s6, 10")
    a("v_add_u32 v2, s36, v1")
    a("v_add_u32 v5, 61440, v2")
    a("v_and_b32 v3, 15, v0")
    a("v_mul_u32_u24 v3, 2560, v3")
    a("v_lshrrev_b32 v4, 4, v0")
    a("v_lshl_add_u32 v3, v4, 3, v3")
    a("s_mul_i32 s37, s4, %d" % (96 * 2560))
    a("s_mul_i32 s38, s3, 1280")
    a("s_add_u32 s37, s37, s38")
    a("s_mul_i32 s38, s5, 160")
    a("s_add_u32 s37, s37, s38")
    a("s_waitcnt lgkmcnt(0)")
    a("s_barrier")
    stamp(a)
    for n in range(8):
        for src_ in range(4):
            a("ds_read_b128 %s, v%d offset:%d" % (vr(FB + 16 * n + 4 * src_), 2 if src_ < 2 else 5, (src_ % 2) * 30720 + n * 4096))
    for n in range(8):
        if n == 7:
            a("s_cmp_ge_u32 s6, 2")
            a("s_cbranch_scc1 L_k2_fin")
        a("s_add_u32 s39, s6, %d" % (4 * n))
        a("s_mul_i32 s40, s39, 43")
        a("s_lshr_b32 s40, s40, 8")
        a("s_mul_i32 s41, s40, 6")
        a("s_sub_u32 s41, s39, s41")
        a("s_mul_i32 s41, s41, %d" % (16 * 2560))
        a("s_lshl_b32 s40, s40, 5")
        a("s_add_u32 s41, s41, s40")
        a("s_add_u32 s41, s41, s37")
        a("s_waitcnt lgkmcnt(%d)" % min(15, 4 * (7 - n)))
        b = FB + 16 * n
        for r in range(4):
            a("v_add_f32 v%d, v%d, v%d" % (b + r, b + r, b + 4 + r))
            a("v_add_f32 v%d, v%d, v%d" % (b + 8 + r, b + 8 + r, b + 12 + r))
        for r in range(4):
            a("v_add_f32 v%d, v%d, v%d" % (b + r, b + r, b + 8 + r))
        a("v_cvt_pk_bf16_f32 v%d, v%d, v%d" % (b + 4, b, b + 1))
        a("v_cvt_pk_bf16_f32 v%d, v%d, v%d" % (b + 5, b + 2, b + 3))
        a("buffer_store_dwordx2 %s, v3, s[12:15], s41 offen" % vr(b + 4, 2))
    a.lab("L_k2_fin")
    stamp(a)
    stamp_dump(a, 6, "k2")
    a.lab("L_k2_end")
    a("s_endpgm")

def gen_stream(a):
    a.lab("stream_kernel")
    a("s_cmp_ge_u32 s2, 256")
    a("s_cbranch_scc1 L_st_end")
    a("s_lshr_b32 s3, s2, 7")
    a("s_and_b32 s4, s2, 127")
    a("s_mul_i32 s5, s3, 40")
    a("s_add_u32 s6, s0, s5")
    a("s_addc_u32 s7, s1, 0")
    a("s_load_dwordx4 s[8:11], s[6:7], 8")
    a("s_waitcnt lgkmcnt(0)")
    srd(a, 16, 8, SZ_KV)
    srd(a, 20, 10, SZ_KV)
    a("v_lshlrev_b32 v1, 4, v0")
    a("s_lshl_b32 s12, s4, 18")
    for i in range(16):
        fl = ""
        for x in sys.argv:
            if x.startswith("--sflag="):
                fl = " " + x.split("=")[1].replace("+", " ")
        a("buffer_load_dwordx4 %s, v1, s[16:19], s12 offen%s" % (vr(4 + 8 * (i % 8)), fl))
        a("buffer_load_dwordx4 %s, v1, s[20:23], s12 offen%s" % (vr(8 + 8 * (i % 8)), fl))
        a("s_add_u32 s12, s12, 16384")
    a("s_waitcnt vmcnt(0)")
    a.lab("L_st_end")
    a("s_endpgm")

def kd(a, name, vgpr, sgpr=102, acc=None):
    a.L.append(".p2align 6")
    a.L.append(".amdhsa_kernel %s" % name)
    a.L.append("  .amdhsa_next_free_vgpr %d" % vgpr)
    a.L.append("  .amdhsa_next_free_sgpr %d" % sgpr)
    a.L.append("  .amdhsa_accum_offset %d" % (acc if acc else (vgpr + 3) // 4 * 4))
    a.L.append("  .amdhsa_group_segment_fixed_size 0")
    a.L.append("  .amdhsa_kernarg_size 104")
    a.L.append("  .amdhsa_user_sgpr_count 2")
    a.L.append("  .amdhsa_user_sgpr_kernarg_segment_ptr 1")
    a.L.append("  .amdhsa_system_sgpr_workgroup_id_x 1")
    a.L.append(".end_amdhsa_kernel")

def main():
    hdr = open("cdna_kernels/%s.s.ref" % NAME).read().split("; Override launch geometry")[0]
    a = A()
    a.L.append(hdr.rstrip("\n"))
    if "--stream" in sys.argv:
        a.L.append("; @launch kernel=stream_kernel grid=(256,1,1) block=(1024,1,1) lds=0")
    a.L.append("; @launch kernel=attn_kernel grid=(256,1,1) block=(768,1,1) lds=%d" % LDS1)
    if "--twice" in sys.argv:
        a.L.append("; @launch kernel=attn_kernel grid=(256,1,1) block=(768,1,1) lds=%d" % LDS1)
    a.L.append("; @launch kernel=oproj_kernel grid=(256,1,1) block=(256,1,1) lds=126976")
    if "--k2twice" in sys.argv:
        a.L.append("; @launch kernel=oproj_kernel grid=(256,1,1) block=(256,1,1) lds=126976")
    a.L.append('.amdgcn_target "amdgcn-amd-amdhsa--gfx950"')
    a.L.append(".text")
    for nm, g in (("wprep_kernel", gen_k0), ("attn_kernel", gen_k1), ("oproj_kernel", gen_k2), ("stream_kernel", gen_stream)):
        a.L.append(".globl %s" % nm)
        a.L.append(".p2align 8")
        a.L.append(".type %s,@function" % nm)
        g(a)
    a.L.append('.section .rodata,"a"')
    kd(a, "wprep_kernel", 48)
    kd(a, "stream_kernel", 72)
    kd(a, "attn_kernel", 168)
    kd(a, "oproj_kernel", 228 + 120, acc=228)
    args = [x for x in sys.argv[1:] if not x.startswith("--")]
    out = args[0] if args else "cdna_kernels/%s.s" % NAME
    open(out, "w").write(a.text())

main()
```

```python
import sys

NAME = "concat_heads__gqa_block_cached__mha_block_cached__near_ridge"

class A:
    def __init__(self):
        self.L = []
    def __call__(self, s):
        self.L.append("    " + s)
    def lab(self, s):
        self.L.append(s + ":")
    def c(self, s):
        self.L.append("    ; " + s)
    def text(self):
        return "\n".join(self.L) + "\n"

def vr(b, n=4):
    return "v[%d:%d]" % (b, b + n - 1)
def sr(b, n=4):
    return "s[%d:%d]" % (b, b + n - 1)

WS_OF = 0
OF_BYTES = 2 * 96 * 128 * 1024
WS_WF = OF_BYTES
WF_BYTES = 2 * 40 * 128 * 1024
WS_BYTES = 268435456

SZ_X = 8 * 192 * 640 * 2
SZ_KV = 8 * 32 * 512 * 128 * 2
SZ_W = 640 * 4096 * 2
SZ_OUT = 8 * 192 * 1280 * 2

def srd(a, d, base, size):
    a("s_mov_b32 s%d, s%d" % (d, base))
    a("s_and_b32 s%d, s%d, 0xffff" % (d + 1, base + 1))
    a("s_mov_b32 s%d, 0x%x" % (d + 2, size))
    a("s_mov_b32 s%d, 0x00020000" % (d + 3))

def gen_k0(a):
    a.lab("wprep_kernel")
    a("s_cmp_ge_u32 s2, 256")
    a("s_cbranch_scc1 L_k0_end")
    a("s_lshr_b32 s3, s2, 7")
    a("s_and_b32 s4, s2, 127")
    a("s_mul_i32 s5, s3, 40")
    a("s_add_u32 s6, s0, s5")
    a("s_addc_u32 s7, s1, 0")
    a("s_load_dwordx2 s[8:9], s[6:7], 32")
    a("s_load_dwordx2 s[10:11], s[0:1], 96")
    a("v_lshrrev_b32 v1, 6, v0")
    a("v_and_b32 v0, 63, v0")
    a("s_nop 0")
    a("v_readfirstlane_b32 s12, v1")
    a("s_waitcnt lgkmcnt(0)")
    srd(a, 16, 8, SZ_W)
    srd(a, 20, 10, WS_BYTES)
    a("v_lshrrev_b32 v1, 4, v0")
    a("v_and_b32 v2, 15, v0")
    a("v_mul_u32_u24 v1, 5120, v1")
    a("v_lshl_add_u32 v1, v2, 4, v1")
    a("s_mul_i32 s13, s4, 40960")
    a("s_lshl_b32 s14, s12, 8")
    a("s_add_u32 s13, s13, s14")
    a("s_mul_i32 s15, s12, 8704")
    for P in range(8):
        a("s_add_u32 s24, s13, %d" % ((16 * (P // 4) + P % 4) * 1280))
        a("s_add_u32 m0, s15, %d" % (P * 1088))
        a("s_nop 0")
        a("buffer_load_dwordx4 v1, s[16:19], s24 offen lds")
    a("v_lshrrev_b32 v3, 5, v0")
    a("v_bfe_u32 v4, v0, 4, 1")
    a("v_bfe_u32 v5, v0, 2, 2")
    a("v_and_b32 v6, 3, v0")
    a("v_lshl_add_u32 v3, v3, 2, v5")
    a("v_mul_u32_u24 v3, 1088, v3")
    a("v_lshl_add_u32 v3, v4, 8, v3")
    a("v_lshl_add_u32 v3, v6, 3, v3")
    a("v_add_u32 v3, s15, v3")
    a("s_mul_i32 s25, s3, 40")
    a("s_lshl_b32 s26, s12, 3")
    a("s_add_u32 s25, s25, s26")
    a("s_lshl_b32 s25, s25, 7")
    a("s_add_u32 s25, s25, s4")
    a("s_lshl_b32 s25, s25, 10")
    a("s_add_u32 s25, s25, 0x%x" % WS_WF)
    a("v_lshlrev_b32 v7, 4, v0")
    a("s_waitcnt vmcnt(0)")
    for nt in range(8):
        a("ds_read_b64_tr_b16 %s, v3 offset:%d" % (vr(8 + 4 * nt, 2), nt * 32))
        a("ds_read_b64_tr_b16 %s, v3 offset:%d" % (vr(10 + 4 * nt, 2), nt * 32 + 512))
    a("s_waitcnt lgkmcnt(0)")
    for nt in range(8):
        a("buffer_store_dwordx4 %s, v7, s[20:23], s25 offen" % vr(8 + 4 * nt))
        a("s_add_u32 s25, s25, 0x%x" % (128 * 1024))
    a.lab("L_k0_end")
    a("s_endpgm")

SLOT = 34816
QPB = 29696
QP0 = 2 * SLOT
NQB = 3
LDS1 = 160 * 1024
V_ACC = 0
V_Q = 64
V_S = 96
V_NM = 112
V_KV = 128
V_KA0, V_KA1, V_VA, V_DK, V_L, V_T0, V_T1, V_T2 = 160, 161, 162, 163, 164, 165, 166, 167
V_FS = [64, 104]
V_XA0, V_XA1, V_WA, V_DQ = 144, 145, 146, 147
S_BLK, S_B, S_HP, S_W, S_HSEL, S_QT = 3, 4, 5, 6, 7, 44
S_X, S_K, S_V, S_WQ, S_WS = 20, 24, 28, 32, 40
S_D1, S_D2 = 48, 52
S_G1, S_G1S, S_G1A, S_L1, S_L1S = 56, 57, 58, 59, 60
S_G2, S_G2S, S_L2 = 61, 62, 63
S_T0, S_T1, S_T2, S_T3 = 64, 65, 66, 67
S_ROLE = 68
S_SC = 70

STAMPS = "--stamps" in sys.argv
_stamp_n = [0]
def stamp(a):
    if not STAMPS:
        return
    n = _stamp_n[0]; _stamp_n[0] += 1
    a("%s s[%d:%d]" % ("s_memrealtime" if "--rt" in sys.argv else "s_memtime", 72 + 2 * n, 73 + 2 * n))

def stamp_dump(a, S_W=6, tag="k1"):
    if not STAMPS:
        return
    n = _stamp_n[0]
    _stamp_n[0] = 0
    a("s_waitcnt lgkmcnt(0)")
    a("s_cmp_lg_u32 s2, 0")
    a("s_cbranch_scc1 L_sd_e_%s" % tag)
    if tag == "k1":
        a("s_and_b32 s64, s%d, 3" % S_W)
        a("s_cmp_lg_u32 s64, 0")
        a("s_cbranch_scc1 L_sd_e_%s" % tag)
    a("s_load_dwordx2 s[10:11], s[0:1], 88")
    a("s_waitcnt lgkmcnt(0)")
    srd(a, 12, 10, 256)
    a("s_lshl_b32 s64, s%d, %d" % (S_W, 4 if tag == "k1" else 6))
    a("v_mov_b32 v1, 0")
    for i in range(n):
        a("s_sub_u32 s65, s%d, s72" % (72 + 2 * i))
        a("v_mov_b32 v2, s65")
        a("buffer_store_dword v2, v1, s[12:15], s64 offen offset:%d" % (4 * i))
    a.lab("L_sd_e_%s" % tag)

TOUCH_STRIDE = 128
NTOUCH = 8
for x in sys.argv:
    if x.startswith("--touch="):
        TOUCH_STRIDE = int(x.split("=")[1])
    if x.startswith("--ntouch="):
        NTOUCH = int(x.split("=")[1])
TPACE = 1
NPRE = 2
KVIT = -1
KVD = 0
for x in sys.argv:
    if x.startswith("--kvit="):
        KVIT = int(x.split("=")[1])
    if x.startswith("--kvd="):
        KVD = int(x.split("=")[1])
QRD = [3, 3, 2, 2, 2, 2, 2, 2]
for x in sys.argv:
    if x.startswith("--qrd="):
        QRD = [int(c) for c in x.split("=")[1]]
QPRIO = None
for x in sys.argv:
    if x.startswith("--qprio="):
        QPRIO = int(x.split("=")[1])
WQF = ""
XF = ""
for x in sys.argv:
    if x.startswith("--wqf="):
        WQF = " " + x.split("=")[1].replace("+", " ")
    if x.startswith("--xf="):
        XF = " " + x.split("=")[1].replace("+", " ")
OSF = ""
for x in sys.argv:
    if x.startswith("--osf="):
        OSF = " " + x.split("=")[1].replace("+", " ")
TPER = 1
for x in sys.argv:
    if x.startswith("--tper="):
        TPER = int(x.split("=")[1])
XWT = "--noxwt" not in sys.argv
WOF = ""
for x in sys.argv:
    if x.startswith("--wof="):
        WOF = " " + x.split("=")[1].replace("+", " ")
WO_IT = 3
TSTART = 9
TF = " nt"
for x in sys.argv:
    if x.startswith("--woit="):
        WO_IT = int(x.split("=")[1])
    if x.startswith("--tstart="):
        TSTART = int(x.split("=")[1])
    if x.startswith("--tf="):
        TF = " " + x.split("=")[1].replace("+", " ")
KVF = ""
for x in sys.argv:
    if x.startswith("--kvf="):
        KVF = " " + x.split("=")[1].replace("+", " ")
PRIO = None
for x in sys.argv:
    if x.startswith("--prio="):
        PRIO = [int(c) for c in x.split("=")[1]]
for x in sys.argv:
    if x.startswith("--tpace="):
        TPACE = int(x.split("=")[1])
    if x.startswith("--npre="):
        NPRE = int(x.split("=")[1])
V_DW, V_WR, V_WST, V_TCH, V_WD = 148, 149, 150, 151, 152
S_WO = 36
S_WG, S_WL, S_WSO = 47, 45, 46
WTAIL = 4 * SLOT

def gen_k1(a):
    a.lab("attn_kernel")
    a("s_cmp_ge_u32 s2, 256")
    a("s_cbranch_scc1 L_k1_end")
    stamp(a)
    if "--wgt" in sys.argv:
        a("s_memrealtime s[100:101]")
    a("s_bfe_u32 s%d, s2, 0x10002" % S_BLK)
    a("s_lshr_b32 s%d, s2, 5" % S_B)
    a("s_and_b32 s%d, s2, 3" % S_HP)
    a("s_lshl_b32 s%d, s%d, 2" % (S_HP, S_HP))
    a("s_bfe_u32 s%d, s2, 0x20003" % S_T0)
    a("s_add_u32 s%d, s%d, s%d" % (S_HP, S_HP, S_T0))
    a("s_mul_i32 s%d, s%d, 40" % (S_T0, S_BLK))
    a("s_add_u32 s8, s0, s%d" % S_T0)
    a("s_addc_u32 s9, s1, 0")
    a("s_load_dwordx8 s[12:19], s[8:9], 0")
    a("s_load_dwordx2 s[10:11], s[0:1], 96")
    a("s_lshr_b32 s%d, s2, 7" % S_T1)
    a("s_mul_i32 s%d, s%d, 40" % (S_T0, S_T1))
    a("s_add_u32 s8, s0, s%d" % S_T0)
    a("s_addc_u32 s9, s1, 0")
    a("s_load_dwordx2 s[46:47], s[8:9], 32")
    a("v_lshrrev_b32 v1, 6, v0")
    a("v_and_b32 v0, 63, v0")
    a("s_nop 0")
    a("v_readfirstlane_b32 s%d, v1" % S_W)
    a("s_nop 3")
    a("s_cmp_ge_u32 s%d, 6" % S_W)
    a("s_cselect_b32 s%d, 1, 0" % S_HSEL)
    a("s_mul_i32 s%d, s%d, 6" % (S_T0, S_HSEL))
    a("s_sub_u32 s%d, s%d, s%d" % (S_QT, S_W, S_T0))
    a("s_lshr_b32 s%d, s%d, 2" % (S_ROLE, S_W))
    a("s_mov_b32 s%d, 0x3e0293ee" % S_SC)
    a("s_mov_b32 s%d, 0x3e0293ee" % (S_SC + 1))
    a("s_waitcnt lgkmcnt(0)")
    srd(a, S_X, 12, SZ_X)
    srd(a, S_K, 14, SZ_KV)
    srd(a, S_V, 16, SZ_KV)
    srd(a, S_WQ, 18, SZ_W)
    srd(a, S_WS, 10, WS_BYTES)
    srd(a, S_WO, 46, SZ_W)
    a("v_and_b32 v1, 31, v0")
    a("v_lshrrev_b32 v2, 5, v0")
    a("v_bfe_u32 v3, v0, 4, 1")
    a("v_bfe_u32 v4, v0, 2, 2")
    a("v_and_b32 v5, 3, v0")
    a("s_cmp_eq_u32 s%d, 0" % S_ROLE)
    for i in range(3):
        a("s_cselect_b32 s%d, s%d, s%d" % (S_D1 + i, S_X + i, S_WQ + i))
    a("s_mov_b32 s%d, 0x00020000" % (S_D1 + 3))
    a("s_mov_b32 s%d, 8192" % S_T0)
    a("s_cselect_b32 s%d, 20480, s%d" % (S_G1S, S_T0))
    a("s_cselect_b32 s%d, 64, 262144" % S_G1A)
    a("s_mov_b32 s%d, 1088" % S_T0)
    a("s_cselect_b32 s%d, 1024, s%d" % (S_L1S, S_T0))
    a("s_mul_i32 s%d, s%d, 192" % (S_T0, S_B))
    a("s_mul_i32 s%d, s%d, 48" % (S_T1, S_W))
    a("s_add_u32 s%d, s%d, s%d" % (S_T0, S_T0, S_T1))
    a("s_mul_i32 s%d, s%d, 1280" % (S_T0, S_T0))
    a("s_mul_i32 s%d, s%d, 3072" % (S_T1, S_W))
    a("s_add_u32 s%d, s%d, %d" % (S_T1, S_T1, QP0))
    a("s_sub_u32 s%d, s%d, 4" % (S_T2, S_W))
    a("s_lshl_b32 s%d, s%d, 16" % (S_T3, S_T2))
    a("s_lshl_b32 s98, s%d, 9" % S_HP)
    a("s_add_u32 s%d, s%d, s98" % (S_T3, S_T3))
    a("s_mul_i32 s%d, s%d, 4352" % (S_T2, S_T2))
    a("s_add_u32 s%d, s%d, %d" % (S_T2, S_T2, QP0 + 12288))
    a("s_cmp_eq_u32 s%d, 0" % S_ROLE)
    a("s_cselect_b32 s%d, s%d, s%d" % (S_G1, S_T0, S_T3))
    a("s_cselect_b32 s%d, s%d, s%d" % (S_L1, S_T1, S_T2))
    a("v_lshrrev_b32 v6, 2, v0")
    a("v_bfe_u32 v7, v0, 4, 2")
    a("v_xor_b32 v7, v5, v7")
    a("v_mul_u32_u24 v6, 1280, v6")
    a("v_lshl_add_u32 v6, v7, 4, v6")
    a("v_lshlrev_b32 v7, 15, v2")
    a("v_lshl_add_u32 v7, v1, 4, v7")
    a("s_cselect_b64 vcc, -1, 0")
    a("v_cndmask_b32 v%d, v7, v6, vcc" % V_DQ)
    a("s_sub_u32 s%d, s%d, 8" % (S_T0, S_W))
    a("s_and_b32 s%d, s%d, 1" % (S_T1, S_T0))
    a("s_lshl_b32 s%d, s%d, 5" % (S_T2, S_B))
    a("s_lshl_b32 s%d, s%d, 1" % (S_T3, S_HP))
    a("s_add_u32 s%d, s%d, s%d" % (S_T2, S_T2, S_T3))
    a("s_add_u32 s%d, s%d, s%d" % (S_T2, S_T2, S_T1))
    a("s_lshl_b32 s%d, s%d, 17" % (S_G2, S_T2))
    a("s_mul_i32 s%d, s%d, 8704" % (S_L2, S_T0))
    a("s_and_b32 s%d, s2, 127" % S_T1)
    a("s_mul_i32 s%d, s%d, 40960" % (S_WG, S_T1))
    a("s_lshl_b32 s%d, s%d, 8" % (S_T2, S_T0))
    a("s_add_u32 s%d, s%d, s%d" % (S_WG, S_WG, S_T2))
    a("s_lshr_b32 s%d, s2, 7" % S_T2)
    a("s_lshl_b32 s%d, s%d, 10" % (S_T2, S_T2))
    a("s_add_u32 s%d, s%d, s%d" % (S_T2, S_T2, S_T1))
    a("s_mul_i32 s%d, s%d, 5120" % (S_T2, S_T2))
    a("s_add_u32 s%d, s%d, 0x%x" % (S_WSO, S_T2, WS_WF))
    a("s_lshl_b32 s%d, s%d, 3" % (S_WL, S_T0))
    a("s_cmp_lt_u32 s%d, 10" % S_W)
    for i in range(3):
        a("s_cselect_b32 s%d, s%d, s%d" % (S_D2 + i, S_K + i, S_V + i))
    a("s_mov_b32 s%d, 0x00020000" % (S_D2 + 3))
    a("v_lshrrev_b32 v6, 4, v0")
    a("v_and_b32 v7, 15, v0")
    a("v_xor_b32 v8, v7, v6")
    a("v_lshlrev_b32 v8, 4, v8")
    a("v_lshl_add_u32 v8, v6, 8, v8")
    a("v_lshlrev_b32 v7, 4, v7")
    a("v_mul_u32_u24 v9, 5120, v6")
    a("v_add_u32 v%d, v9, v7" % V_DW)
    a("v_lshl_add_u32 v7, v6, 10, v7")
    a("s_cselect_b64 vcc, -1, 0")
    a("v_cndmask_b32 v%d, v7, v8, vcc" % V_DK)
    a("v_mul_u32_u24 v%d, %d, v0" % (V_TCH, TOUCH_STRIDE))

    r2 = []
    def r2_wait_n(tag):
        idx = max(i for i, t in enumerate(r2) if t == tag)
        return len(r2) - 1 - idx

    def qp_dma(stage):
        buf = stage % NQB
        lab = "L_qd_%d" % stage
        a("s_cmp_ge_u32 s%d, 2" % S_ROLE)
        a("s_cbranch_scc1 %s_e" % lab)
        a("s_mov_b32 s%d, s%d" % (S_T0, S_G1))
        a("s_add_u32 s%d, s%d, %d" % (S_T1, S_L1, buf * QPB))
        a("s_cmp_eq_u32 s%d, 0" % S_ROLE)
        a("s_cbranch_scc0 %s_w" % lab)
        for k in range(3):
            a("s_mov_b32 m0, s%d" % S_T1)
            a("s_nop 0")
            a("buffer_load_dwordx4 v%d, %s, s%d offen%s lds" % (V_DQ, sr(S_D1), S_T0, XF))
            if k < 2:
                a("s_add_u32 s%d, s%d, s%d" % (S_T0, S_T0, S_G1S))
                a("s_add_u32 s%d, s%d, s%d" % (S_T1, S_T1, S_L1S))
        a("s_branch %s_x" % lab)
        a.lab(lab + "_w")
        for k in range(4):
            a("s_mov_b32 m0, s%d" % S_T1)
            a("s_nop 0")
            a("buffer_load_dwordx4 v%d, %s, s%d offen%s lds" % (V_DQ, sr(S_D1), S_T0, WQF))
            if k < 3:
                a("s_add_u32 s%d, s%d, s%d" % (S_T0, S_T0, S_G1S))
                a("s_add_u32 s%d, s%d, s%d" % (S_T1, S_T1, S_L1S))
        a.lab(lab + "_x")
        a("s_add_u32 s%d, s%d, s%d" % (S_G1, S_G1, S_G1A))
        a.lab(lab + "_e")

    def r2_begin(tag):
        a("s_cmp_lt_u32 s%d, 2" % S_ROLE)
        a("s_cbranch_scc1 L_r2_%s" % tag)
    def r2_end(tag):
        a.lab("L_r2_%s" % tag)

    def kv_dma(stage, tag):
        slot = stage % 4
        lab = "L_kd_%s" % tag
        r2_begin(lab)
        a("s_cmp_lt_u32 s%d, 10" % S_W)
        a("s_cbranch_scc0 %s_v" % lab)
        for P in range(8):
            a("s_add_u32 s%d, s%d, %d" % (S_T0, S_G2, stage * 8192 + P * 1024))
            a("s_add_u32 m0, s%d, %d" % (S_L2, slot * SLOT + P * 1088))
            a("s_nop 0")
            a("buffer_load_dwordx4 v%d, %s, s%d offen%s lds" % (V_DK, sr(S_D2), S_T0, KVF))
        a("s_branch L_r2_%s" % lab)
        a.lab(lab + "_v")
        for P in range(8):
            a("s_add_u32 s%d, s%d, %d" % (S_T0, S_G2, stage * 8192 + (16 * (P // 4) + P % 4) * 256))
            a("s_add_u32 m0, s%d, %d" % (S_L2, slot * SLOT + P * 1088))
            a("s_nop 0")
            a("buffer_load_dwordx4 v%d, %s, s%d offen%s lds" % (V_DK, sr(S_D2), S_T0, KVF))
        r2_end(lab)
        r2.extend(["kv%d" % stage] * 8)

    def touch(stage, tag):
        n = 8192 // (64 * TOUCH_STRIDE)
        r2_begin("t" + tag)
        for k in range(n):
            a("s_add_u32 s%d, s%d, %d" % (S_T0, S_G2, stage * 8192 + k * 64 * TOUCH_STRIDE))
            a("buffer_load_dword v%d, v%d, %s, s%d offen%s" % (V_T0, V_TCH, sr(S_D2), S_T0, TF))
            r2.append("touch")
        r2_end("t" + tag)

    def wo_dma(tile4):
        for P in range(8):
            if tile4:
                a("s_add_u32 s%d, s%d, %d" % (S_T0, S_WG, 1024 + (16 * (P // 4) + P % 4) * 1280))
                a("s_mov_b32 m0, %d" % (WTAIL + P * 1088))
            else:
                a("s_add_u32 s%d, s%d, %d" % (S_T0, S_WG, (16 * (P // 4) + P % 4) * 1280))
                a("s_add_u32 m0, s%d, %d" % (S_L2, P * 1088))
            a("s_nop 0")
            a("buffer_load_dwordx4 v%d, %s, s%d offen%s lds" % (V_T0, sr(S_WO), S_T0, WOF))

    def wo_batch(bi, tile4):
        for q in range(2):
            nt = 2 * bi + q
            base = WTAIL if tile4 else 0
            a("ds_read_b64_tr_b16 %s, v%d offset:%d" % (vr(V_WD + 4 * q, 2), V_WR + (1 if tile4 else 0) * 0, nt * 32))
            a("ds_read_b64_tr_b16 %s, v%d offset:%d" % (vr(V_WD + 4 * q + 2, 2), V_WR, nt * 32 + 512))
        a("s_waitcnt lgkmcnt(0)")
        for q in range(2):
            nt = 2 * bi + q
            a("s_add_u32 s%d, s%d, %d" % (S_T0, S_WSO, (nt + (32 if tile4 else 0)) * 131072))
            a("buffer_store_dwordx4 %s, v%d, %s, s%d offen" % (vr(V_WD + 4 * q), V_WST, sr(S_WS), S_T0))

    def role_wait(tag, n0, n1, n2):
        lab = "L_rw_%s" % tag
        vals = [n0, n1, n2]
        for r in range(3):
            if vals[r] is None:
                continue
            a("s_cmp_lg_u32 s%d, %d" % (S_ROLE, r))
            a("s_cbranch_scc1 %s_%d" % (lab, r))
            a("s_waitcnt vmcnt(%d)" % vals[r])
            a.lab("%s_%d" % (lab, r))

    for st in range(3):
        qp_dma(st)
    a("s_barrier")
    if XWT:
        r2_begin("xwt")
        a("s_sub_u32 s%d, s%d, 8" % (S_T3, S_W))
        a("s_bfe_u32 s%d, s2, 0x20003" % S_T0)
        a("s_mul_i32 s%d, s%d, 48" % (S_T0, S_T0))
        a("s_mul_i32 s%d, s%d, 192" % (S_T1, S_B))
        a("s_add_u32 s%d, s%d, s%d" % (S_T0, S_T0, S_T1))
        a("s_mul_i32 s%d, s%d, 1280" % (S_T0, S_T0))
        a("s_lshl_b32 s%d, s%d, 7" % (S_T1, S_T3))
        a("s_add_u32 s%d, s%d, s%d" % (S_T0, S_T0, S_T1))
        a("v_min_u32 v6, 47, v0")
        a("v_mul_u32_u24 v6, 1280, v6")
        a("buffer_load_dword v%d, v6, %s, s%d offen" % (V_T0, sr(S_X), S_T0))
        a("buffer_load_dword v%d, v6, %s, s%d offen offset:512" % (V_T0, sr(S_X), S_T0))
        a("s_cmp_ge_u32 s%d, 2" % S_T3)
        a("s_cbranch_scc1 L_xwt_skip")
        a("buffer_load_dword v%d, v6, %s, s%d offen offset:1024" % (V_T0, sr(S_X), S_T0))
        a.lab("L_xwt_skip")
        a("s_mul_i32 s%d, s%d, 80" % (S_T0, S_B))
        a("s_lshl_b32 s%d, s%d, 4" % (S_T1, S_T3))
        a("s_add_u32 s%d, s%d, s%d" % (S_T0, S_T0, S_T1))
        a("s_lshl_b32 s%d, s%d, 13" % (S_T0, S_T0))
        a("s_lshl_b32 s%d, s%d, 9" % (S_T1, S_HP))
        a("s_add_u32 s%d, s%d, s%d" % (S_T0, S_T0, S_T1))
        a("v_lshrrev_b32 v6, 2, v0")
        a("v_lshlrev_b32 v6, 13, v6")
        a("v_lshl_add_u32 v6, v5, 7, v6")
        a("buffer_load_dword v%d, v6, %s, s%d offen%s" % (V_T0, sr(S_WQ), S_T0, WQF))
        a("s_cmp_lg_u32 s%d, 0" % S_T3)
        a("s_cbranch_scc1 L_xwt_skip2")
        a("s_add_u32 s%d, s%d, %d" % (S_T0, S_T0, 64 * 8192))
        a("buffer_load_dword v%d, v6, %s, s%d offen%s" % (V_T0, sr(S_WQ), S_T0, WQF))
        a.lab("L_xwt_skip2")
        r2_end("xwt")
    if KVIT < 0:
        kv_dma(0, "p0")
        kv_dma(1, "p1")
    tq = list(range(2, 2 + NTOUCH))
    a("s_lshl_b32 s%d, s%d, 5" % (S_T0, S_QT))
    a("v_add_u32 v6, s%d, v1" % S_T0)
    a("v_bfe_u32 v7, v6, 2, 2")
    a("v_xor_b32 v8, v2, v7")
    a("v_lshlrev_b32 v6, 6, v6")
    a("v_lshl_add_u32 v%d, v8, 4, v6" % V_XA0)
    a("v_xor_b32 v8, 2, v8")
    a("v_lshl_add_u32 v%d, v8, 4, v6" % V_XA1)
    a("v_add_u32 v%d, %d, v%d" % (V_XA0, QP0, V_XA0))
    a("v_add_u32 v%d, %d, v%d" % (V_XA1, QP0, V_XA1))
    a("v_lshl_add_u32 v6, v2, 2, v4")
    a("v_mul_u32_u24 v6, 1088, v6")
    a("v_lshl_add_u32 v6, v3, 5, v6")
    a("v_and_b32 v7, 1, v5")
    a("v_lshl_add_u32 v6, v7, 4, v6")
    a("v_lshrrev_b32 v7, 1, v5")
    a("v_lshl_add_u32 v6, v7, 3, v6")
    a("s_lshl_b32 s%d, s%d, 8" % (S_T0, S_HSEL))
    a("s_add_u32 s%d, s%d, %d" % (S_T0, S_T0, QP0 + 12288))
    a("v_add_u32 v%d, s%d, v6" % (V_WA, S_T0))
    a("v_lshrrev_b32 v6, 2, v1")
    a("v_mul_u32_u24 v6, 1088, v6")
    a("v_and_b32 v7, 3, v1")
    a("v_lshl_add_u32 v6, v7, 8, v6")
    a("v_xor_b32 v8, v2, v7")
    a("s_mul_i32 s%d, s%d, 8704" % (S_T0, S_HSEL))
    a("v_add_u32 v6, s%d, v6" % S_T0)
    a("v_lshl_add_u32 v%d, v8, 4, v6" % V_KA0)
    a("v_xor_b32 v8, 2, v8")
    a("v_lshl_add_u32 v%d, v8, 4, v6" % V_KA1)
    a("v_mul_u32_u24 v6, 1088, v4")
    a("v_lshl_add_u32 v6, v2, 8, v6")
    a("v_lshl_add_u32 v6, v3, 5, v6")
    a("v_lshl_add_u32 v6, v5, 3, v6")
    a("s_add_u32 s%d, s%d, 17408" % (S_T0, S_T0))
    a("v_add_u32 v%d, s%d, v6" % (V_VA, S_T0))
    a("v_lshl_add_u32 v6, v2, 2, v4")
    a("v_mul_u32_u24 v6, 1088, v6")
    a("v_lshl_add_u32 v6, v3, 8, v6")
    a("v_lshl_add_u32 v6, v5, 3, v6")
    a("v_add_u32 v%d, s%d, v6" % (V_WR, S_L2))
    a("v_lshlrev_b32 v%d, 4, v0" % V_WST)
    a("v_mov_b32 v%d, v0" % V_T2)

    def qp_reads(stage, fs):
        base = V_FS[fs]
        L = []
        for ks in range(2):
            L.append("ds_read_b128 %s, v%d" % (vr(base + 4 * ks), V_XA0 + ks))
            for t in range(4):
                d = base + 8 + (ks * 4 + t) * 4
                for u in range(2):
                    L.append("ds_read_b64_tr_b16 %s, v%d offset:%d" % (vr(d + 2 * u, 2), V_WA, ks * 8704 + u * 512 + t * 64))
        return L

    def qp_addr_adv(stage_from):
        d = QPB if (stage_from % NQB) != NQB - 1 else -(NQB - 1) * QPB
        for r in (V_XA0, V_XA1, V_WA):
            if d > 0:
                a("v_add_u32 v%d, %d, v%d" % (r, d, r))
            else:
                a("v_subrev_u32 v%d, %d, v%d" % (r, -d, r))

    role_wait("pre", 6, 8, None)
    a("s_barrier")
    stamp(a)
    for ins in qp_reads(0, 0):
        a(ins)
    qp_addr_adv(0)
    NQ = 20
    for j in range(NQ):
        a.c("---- qproj iter %d" % j)
        if j in (5, 10, 15):
            stamp(a)
        if j + 1 <= NQ - 1:
            rem = 1 if j + 2 <= NQ - 1 else 0
            role_wait("q%d" % j, 3 * rem, 4 * rem, None)
        a("s_waitcnt lgkmcnt(0)")
        a("s_barrier")
        if j + 3 < NQ:
            qp_dma(j + 3)
        if tq and j >= TSTART and (j - TSTART) % TPACE == 0:
            for _i in range(TPER):
                if tq: touch(tq.pop(0), "q%d_%d" % (j, _i))
        if j == KVIT:
            kv_dma(0, "p0")
        if j == KVIT + KVD:
            kv_dma(1, "p1")
        if j == 19:
            kv_dma(2, "q19a")
            kv_dma(3, "q19b")
        if QPRIO is not None: a("s_setprio %d" % QPRIO)
        a("s_waitcnt lgkmcnt(0)")
        fs = j & 1
        base = V_FS[fs]
        rd = qp_reads(j + 1, fs ^ 1) if j + 1 < NQ else []
        mf = []
        for ks in range(2):
            for t in range(4):
                c = "0" if (j == 0 and ks == 0) else vr(V_ACC + 16 * t, 16)
                mf.append("v_mfma_f32_32x32x16_bf16 %s, %s, %s, %s" % (
                    vr(V_ACC + 16 * t, 16), vr(base + 8 + (ks * 4 + t) * 4), vr(base + 4 * ks), c))
        ri = 0
        for m in range(8):
            a(mf[m])
            n = QRD[m]
            for _ in range(n):
                if ri < len(rd):
                    a(rd[ri]); ri += 1
        while ri < len(rd):
            a(rd[ri]); ri += 1
        if j + 1 < NQ:
            qp_addr_adv(j + 1)
        if QPRIO is not None: a("s_setprio 0")
    a.c("---- q convert")
    stamp(a)
    role_wait("a_pre2", None, None, r2_wait_n("kv0"))
    a("s_nop 15")
    for t in range(4):
        for p in range(8):
            i0 = V_ACC + 16 * t + 2 * p
            a("v_pk_mul_f32 %s, %s, %s" % (vr(i0, 2), vr(i0, 2), sr(S_SC, 2)))
            a("v_cvt_pk_bf16_f32 v%d, v%d, v%d" % (V_Q + t * 8 + p, i0, i0 + 1))
    a("v_mov_b32 v%d, 0" % V_L)

    def k_reads(stage):
        L = []
        for s in range(8):
            L.append("ds_read_b128 %s, v%d offset:%d" % (vr(V_KV + 4 * s), V_KA0 + (s & 1), (s >> 1) * 64))
        return L
    def v_reads():
        L = []
        for sl in range(2):
            for dt in range(4):
                f = sl * 4 + dt
                for u in range(2):
                    L.append("ds_read_b64_tr_b16 %s, v%d offset:%d" % (vr(V_KV + 4 * f + 2 * u, 2), V_VA, sl * 4352 + u * 512 + dt * 64))
        return L
    def slot_adv(regs, stage_from):
        d = SLOT if (stage_from % 4) != 3 else -3 * SLOT
        for r in regs:
            if d > 0:
                a("v_add_u32 v%d, %d, v%d" % (r, d, r))
            else:
                a("v_subrev_u32 v%d, %d, v%d" % (r, -d, r))

    a("s_barrier")
    for ins in k_reads(0):
        a(ins)
    slot_adv((V_KA0, V_KA1), 0)
    NT = 16
    rare = []
    for t in range(NT):
        a.c("---- attn stage %d" % t)
        if t in (0, 1, 4, 8, 12):
            stamp(a)
        if t + 1 < NT:
            role_wait("a%d" % t, None, None, r2_wait_n("kv%d" % (t + 1)))
        a("s_barrier")
        if t >= 1 and t + 3 < NT:
            kv_dma(t + 3, "a%d" % t)
        if t == 13:
            a("v_lshrrev_b32 v%d, 4, v%d" % (V_T0, V_T2))
            a("v_and_b32 v%d, 15, v%d" % (V_T1, V_T2))
            a("v_mul_u32_u24 v%d, 5120, v%d" % (V_T0, V_T0))
            a("v_lshl_add_u32 v%d, v%d, 4, v%d" % (V_T0, V_T1, V_T0))
            r2_begin("wo")
            a("s_cmp_lg_u32 s%d, 8" % S_W)
            a("s_cbranch_scc1 L_wo4_skip")
            wo_dma(True)
            a.lab("L_wo4_skip")
            wo_dma(False)
            r2_end("wo")
            r2.extend(["wo"] * 8)
        if PRIO: a("s_setprio %d" % PRIO[0])
        a("s_waitcnt lgkmcnt(0)")
        vrd = v_reads()
        S = V_S
        for s in range(8):
            c = ("0" if t == 0 else vr(V_NM, 16)) if s == 0 else vr(S, 16)
            a("v_mfma_f32_32x32x16_bf16 %s, %s, %s, %s" % (vr(S, 16), vr(V_KV + 4 * s), vr(V_Q + 4 * s), c))
            if s >= 1:
                a(vrd[2 * (s - 1)]); a(vrd[2 * (s - 1) + 1])
        a(vrd[14]); a(vrd[15])
        slot_adv((V_VA,), t)
        if PRIO: a("s_setprio %d" % PRIO[1])
        a("s_nop 7")
        a("s_nop 1")
        T0, T1 = V_T0, V_T1
        a("v_max3_f32 v%d, v%d, v%d, v%d" % (T0, S, S + 1, S + 2))
        a("v_max3_f32 v%d, v%d, v%d, v%d" % (T1, S + 3, S + 4, S + 5))
        a("v_max3_f32 v%d, v%d, v%d, v%d" % (T0, T0, S + 6, S + 7))
        a("v_max3_f32 v%d, v%d, v%d, v%d" % (T1, T1, S + 8, S + 9))
        a("v_max3_f32 v%d, v%d, v%d, v%d" % (T0, T0, S + 10, S + 11))
        a("v_max3_f32 v%d, v%d, v%d, v%d" % (T1, T1, S + 12, S + 13))
        a("v_max3_f32 v%d, v%d, v%d, v%d" % (T0, T0, S + 14, S + 15))
        a("v_max_f32 v%d, v%d, v%d" % (T0, T0, T1))
        if t == 0:
            a("v_mov_b32 v%d, v%d" % (T1, T0))
            a("s_nop 1")
            a("v_permlane32_swap_b32 v%d, v%d" % (T0, T1))
            a("s_nop 1")
            a("v_max_f32 v%d, v%d, v%d" % (T0, T0, T1))
            for i in range(16):
                a("v_sub_f32 v%d, v%d, v%d" % (S + i, S + i, T0))
            for i in range(16):
                a("v_sub_f32 v%d, 0, v%d" % (V_NM + i, T0))
        else:
            a("v_cmp_lt_f32 vcc, 0x41000000, v%d" % T0)
            a("s_cbranch_vccnz L_rare_%d" % t)
            a.lab("L_back_%d" % t)
            R = []
            R.append("L_rare_%d:" % t)
            R.append("    v_mov_b32 v%d, v%d" % (T1, T0))
            R.append("    s_nop 1")
            R.append("    v_permlane32_swap_b32 v%d, v%d" % (T0, T1))
            R.append("    s_nop 1")
            R.append("    v_max_f32 v%d, v%d, v%d" % (T0, T0, T1))
            R.append("    v_max_f32 v%d, 0, v%d" % (T0, T0))
            R.append("    v_exp_f32 v%d, -v%d" % (T1, T0))
            for i in range(16):
                R.append("    v_sub_f32 v%d, v%d, v%d" % (S + i, S + i, T0))
            for i in range(16):
                R.append("    v_sub_f32 v%d, v%d, v%d" % (V_NM + i, V_NM + i, T0))
            for i in range(64):
                R.append("    v_mul_f32 v%d, v%d, v%d" % (V_ACC + i, V_ACC + i, T1))
            R.append("    v_mul_f32 v%d, v%d, v%d" % (V_L, V_L, T1))
            R.append("    s_nop 1")
            R.append("    s_branch L_back_%d" % t)
            rare += R
        for i in range(16):
            a("v_exp_f32 v%d, v%d" % (S + i, S + i))
        for i in range(16):
            a("v_add_f32 v%d, v%d, v%d" % (V_L, V_L, S + i))
        for p in range(4):
            a("v_cvt_pk_bf16_f32 v%d, v%d, v%d" % (S + p, S + 2 * p, S + 2 * p + 1))
        for p in range(4):
            a("v_cvt_pk_bf16_f32 v%d, v%d, v%d" % (S + 8 + p, S + 8 + 2 * p, S + 8 + 2 * p + 1))
        if PRIO: a("s_setprio %d" % PRIO[2])
        a("s_waitcnt lgkmcnt(0)")
        krd = k_reads(t + 1) if t + 1 < NT else []
        for f in range(8):
            sl, dt = f // 4, f % 4
            c = "0" if (t == 0 and sl == 0) else vr(V_ACC + 16 * dt, 16)
            a("v_mfma_f32_32x32x16_bf16 %s, %s, %s, %s" % (vr(V_ACC + 16 * dt, 16), vr(V_KV + 4 * f), vr(S + 8 * sl), c))
            if f >= 1 and krd:
                a(krd[f - 1])
        if krd:
            a(krd[7])
            slot_adv((V_KA0, V_KA1), t + 1)
    a.c("---- epilogue")
    stamp(a)
    T0, T1 = V_T0, V_T1
    a("v_mov_b32 v%d, v%d" % (T1, V_L))
    a("s_nop 1")
    a("v_permlane32_swap_b32 v%d, v%d" % (V_L, T1))
    a("s_nop 1")
    a("v_add_f32 v%d, v%d, v%d" % (V_L, V_L, T1))
    a("v_rcp_f32 v%d, v%d" % (V_L, V_L))
    a("s_lshl_b32 s%d, s%d, 4" % (S_T0, S_BLK))
    a("s_lshl_b32 s%d, s%d, 1" % (S_T1, S_B))
    a("s_add_u32 s%d, s%d, s%d" % (S_T0, S_T0, S_T1))
    a("s_cmp_ge_u32 s%d, 3" % S_QT)
    a("s_cselect_b32 s%d, 1, 0" % S_T1)
    a("s_add_u32 s%d, s%d, s%d" % (S_T0, S_T0, S_T1))
    a("s_mul_i32 s%d, s%d, 3" % (S_T1, S_T1))
    a("s_sub_u32 s%d, s%d, s%d" % (S_T2, S_QT, S_T1))
    a("s_lshl_b32 s%d, s%d, 7" % (S_T0, S_T0))
    a("s_lshl_b32 s%d, s%d, 1" % (S_T1, S_HP))
    a("s_add_u32 s%d, s%d, s%d" % (S_T1, S_T1, S_HSEL))
    a("s_lshl_b32 s%d, s%d, 2" % (S_T1, S_T1))
    a("s_add_u32 s%d, s%d, s%d" % (S_T0, S_T0, S_T1))
    a("s_mul_i32 s%d, s%d, 6144" % (S_T0, S_T0))
    a("s_lshl_b32 s%d, s%d, 11" % (S_T2, S_T2))
    a("s_add_u32 s%d, s%d, s%d" % (S_T0, S_T0, S_T2))
    ln = V_T2
    a("v_and_b32 v%d, 15, v%d" % (T0, ln))
    a("v_bfe_u32 v%d, v%d, 4, 1" % (T1, ln))
    a("v_lshlrev_b32 v%d, 10, v%d" % (T1, T1))
    a("v_lshl_add_u32 v%d, v%d, 4, v%d" % (T0, T0, T1))
    a("v_lshrrev_b32 v%d, 5, v%d" % (T1, ln))
    a("v_lshl_add_u32 v%d, v%d, 8, v%d" % (T0, T1, T0))
    a("s_nop 7")
    for dt in range(4):
        for half in range(2):
            b0 = V_ACC + 16 * dt + 8 * half
            d = V_Q + (dt * 2 + half) * 4
            for p in range(4):
                a("v_mul_f32 v%d, v%d, v%d" % (b0 + 2 * p, b0 + 2 * p, V_L))
                a("v_mul_f32 v%d, v%d, v%d" % (b0 + 2 * p + 1, b0 + 2 * p + 1, V_L))
                a("v_cvt_pk_bf16_f32 v%d, v%d, v%d" % (d + p, b0 + 2 * p, b0 + 2 * p + 1))
            if "--noostore" not in sys.argv:
                a("buffer_store_dwordx4 %s, v%d, %s, s%d offen offset:%d%s" % (vr(d), T0, sr(S_WS), S_T0, half * 512, OSF))
        a("s_add_u32 s%d, s%d, 6144" % (S_T0, S_T0))
    r2_begin("wofin")
    ln = V_T2
    a("v_lshrrev_b32 v1, 5, v%d" % ln)
    a("v_bfe_u32 v2, v%d, 4, 1" % ln)
    a("v_bfe_u32 v3, v%d, 2, 2" % ln)
    a("v_and_b32 v4, 3, v%d" % ln)
    a("v_lshl_add_u32 v1, v1, 2, v3")
    a("v_mul_u32_u24 v1, 1088, v1")
    a("v_lshl_add_u32 v1, v2, 8, v1")
    a("v_lshl_add_u32 v1, v4, 3, v1")
    a("v_add_u32 v2, s%d, v1" % S_L2)
    a("v_add_u32 v3, %d, v1" % WTAIL)
    a("v_lshlrev_b32 v4, 4, v%d" % ln)
    a("s_waitcnt vmcnt(%d)" % (0 if "--noostore" in sys.argv else 8))
    for tile4 in (False, True):
        if tile4:
            a("s_cmp_lg_u32 s%d, 8" % S_W)
            a("s_cbranch_scc1 L_r2_wofin")
        for nt in range(8):
            a("ds_read_b64_tr_b16 %s, v%d offset:%d" % (vr(8 + 4 * nt, 2), 3 if tile4 else 2, nt * 32))
            a("ds_read_b64_tr_b16 %s, v%d offset:%d" % (vr(10 + 4 * nt, 2), 3 if tile4 else 2, nt * 32 + 512))
        a("s_waitcnt lgkmcnt(0)")
        for nt in range(8):
            if tile4:
                n_ = 32 + nt
                a("s_add_u32 s%d, s%d, %d" % (S_T0, S_WSO, (n_ // 5) * 128 * 5120 + (n_ % 5) * 1024))
            else:
                a("s_add_u32 s%d, s%d, %d" % (S_T1, S_WL, nt))
                a("s_mul_i32 s%d, s%d, 52" % (S_T2, S_T1))
                a("s_lshr_b32 s%d, s%d, 8" % (S_T2, S_T2))
                a("s_mul_i32 s%d, s%d, 5" % (S_T3, S_T2))
                a("s_sub_u32 s%d, s%d, s%d" % (S_T1, S_T1, S_T3))
                a("s_mul_i32 s%d, s%d, %d" % (S_T2, S_T2, 128 * 5120))
                a("s_lshl_b32 s%d, s%d, 10" % (S_T1, S_T1))
                a("s_add_u32 s%d, s%d, s%d" % (S_T0, S_WSO, S_T2))
                a("s_add_u32 s%d, s%d, s%d" % (S_T0, S_T0, S_T1))
            a("buffer_store_dwordx4 %s, v4, %s, s%d offen%s" % (vr(8 + 4 * nt), sr(S_WS), S_T0, OSF))
        a("s_nop 1")
    r2_end("wofin")
    if "--wgt" in sys.argv:
        a("s_waitcnt vmcnt(0)")
        a("s_memrealtime s[98:99]")
        a("s_waitcnt lgkmcnt(0)")
        a("s_cmp_lg_u32 s%d, 0" % S_W)
        a("s_cbranch_scc1 L_wgt_e")
        a("s_lshl_b32 s64, s2, 3")
        a("s_add_u32 s64, s64, 0x4000000")
        a("v_mov_b32 v1, 0")
        a("v_mov_b32 v2, s100")
        a("v_mov_b32 v3, s98")
        a("buffer_store_dwordx2 v[2:3], v1, %s, s64 offen" % sr(S_WS))
        a.lab("L_wgt_e")
    stamp(a)
    stamp_dump(a)
    a.lab("L_k1_end")
    a("s_endpgm")
    a.L += rare

def gen_k2(a):
    a.lab("oproj_kernel")
    a("s_cmp_ge_u32 s2, 256")
    a("s_cbranch_scc1 L_k2_end")
    stamp(a)
    a("s_load_dwordx2 s[8:9], s[0:1], 80")
    a("s_load_dwordx2 s[10:11], s[0:1], 96")
    a("s_and_b32 s3, s2, 7")
    a("s_lshr_b32 s4, s2, 3")
    a("s_and_b32 s5, s4, 7")
    a("s_lshr_b32 s4, s4, 3")
    a("s_lshl_b32 s3, s3, 2")
    a("s_add_u32 s4, s4, s3")
    a("s_lshr_b32 s3, s4, 4")
    a("s_and_b32 s4, s4, 15")
    if "--k2same" in sys.argv:
        a("s_mov_b32 s42, s3"); a("s_mov_b32 s43, s4"); a("s_mov_b32 s44, s5")
    a("v_lshrrev_b32 v1, 6, v0")
    a("v_and_b32 v0, 63, v0")
    a("s_nop 0")
    a("v_readfirstlane_b32 s6, v1")
    a("s_waitcnt lgkmcnt(0)")
    srd(a, 12, 8, SZ_OUT)
    srd(a, 16, 10, WS_BYTES)
    a("v_lshlrev_b32 v1, 4, v0")
    if "--k2same" in sys.argv:
        a("s_mov_b32 s3, 0"); a("s_mov_b32 s4, 0"); a("s_mov_b32 s5, 0")
    a("s_lshl_b32 s20, s3, 4")
    a("s_add_u32 s20, s20, s4")
    a("s_lshl_b32 s20, s20, 7")
    a("s_lshl_b32 s21, s6, 5")
    a("s_add_u32 s20, s20, s21")
    a("s_mul_i32 s24, s20, 6144")
    a("s_add_u32 s25, s24, 4096")
    a("s_lshl_b32 s22, s3, 3")
    a("s_add_u32 s22, s22, s5")
    a("s_lshl_b32 s22, s22, 7")
    a("s_add_u32 s22, s22, s21")
    a("s_mul_i32 s26, s22, 5120")
    a("s_add_u32 s26, s26, 0x%x" % WS_WF)
    a("s_add_u32 s27, s26, 4096")
    ACC = 0
    FB = 8
    NB = 5
    def ar(b, n=4):
        return "a[%d:%d]" % (b, b + n - 1)
    NK = 32
    def loads(ks):
        b = FB + 44 * (ks % NB)
        L = []
        for f in range(6):
            L.append("buffer_load_dwordx4 %s, v1, s[16:19], s%d offen offset:%d" % (vr(b + 4 * f), 24 + f // 4, (f % 4) * 1024))
        for f in range(5):
            L.append("buffer_load_dwordx4 %s, v1, s[16:19], s%d offen offset:%d" % (vr(b + 24 + 4 * f), 26 + f // 4, (f % 4) * 1024))
        if "--k2noload" in sys.argv and ks >= 4:
            L = []
        L.append("s_add_u32 s24, s24, 6144")
        L.append("s_add_u32 s25, s25, 6144")
        L.append("s_add_u32 s26, s26, 5120")
        L.append("s_add_u32 s27, s27, 5120")
        return L
    for ks in range(NB - 1):
        for ins in loads(ks):
            a(ins)
    for ks in range(NK):
        nxt = ks + NB - 1
        ld = loads(nxt) if nxt < NK else []
        outstanding_after = min(NK - 1, ks + NB - 2) - ks
        a("s_waitcnt vmcnt(%d)" % (11 * outstanding_after))
        if ks in (0, 1, 8, 16, 24):
            stamp(a)
        b = FB + 44 * (ks % NB)
        li = 0
        m = 0
        for j in range(5):
            for i in range(6):
                if "--k2nomfma" not in sys.argv:
                    a("v_mfma_f32_16x16x32_bf16 %s, %s, %s, %s" % (ar(ACC + 4 * (j * 6 + i)), vr(b + 24 + 4 * j), vr(b + 4 * i), "0" if ks == 0 else ar(ACC + 4 * (j * 6 + i))))
                m += 1
                if li < len(ld) and m >= 2:
                    a(ld[li]); li += 1
        while li < len(ld):
            a(ld[li]); li += 1
    stamp(a)
    a("s_nop 15")
    a("s_mul_i32 s36, s6, 30720")
    a("v_add_u32 v2, s36, v1")
    for tl in range(30):
        a("ds_write_b128 v2, %s offset:%d" % (ar(ACC + 4 * tl), tl * 1024))
    a("s_lshl_b32 s36, s6, 10")
    a("v_add_u32 v2, s36, v1")
    a("v_add_u32 v5, 61440, v2")
    a("v_and_b32 v3, 15, v0")
    a("v_mul_u32_u24 v3, 2560, v3")
    a("v_lshrrev_b32 v4, 4, v0")
    a("v_lshl_add_u32 v3, v4, 3, v3")
    a("s_mul_i32 s37, s4, %d" % (96 * 2560))
    a("s_mul_i32 s38, s3, 1280")
    a("s_add_u32 s37, s37, s38")
    a("s_mul_i32 s38, s5, 160")
    a("s_add_u32 s37, s37, s38")
    a("s_waitcnt lgkmcnt(0)")
    a("s_barrier")
    stamp(a)
    for n in range(8):
        for src_ in range(4):
            a("ds_read_b128 %s, v%d offset:%d" % (vr(FB + 16 * n + 4 * src_), 2 if src_ < 2 else 5, (src_ % 2) * 30720 + n * 4096))
    for n in range(8):
        if n == 7:
            a("s_cmp_ge_u32 s6, 2")
            a("s_cbranch_scc1 L_k2_fin")
        a("s_add_u32 s39, s6, %d" % (4 * n))
        a("s_mul_i32 s40, s39, 43")
        a("s_lshr_b32 s40, s40, 8")
        a("s_mul_i32 s41, s40, 6")
        a("s_sub_u32 s41, s39, s41")
        a("s_mul_i32 s41, s41, %d" % (16 * 2560))
        a("s_lshl_b32 s40, s40, 5")
        a("s_add_u32 s41, s41, s40")
        a("s_add_u32 s41, s41, s37")
        a("s_waitcnt lgkmcnt(%d)" % min(15, 4 * (7 - n)))
        b = FB + 16 * n
        for r in range(4):
            a("v_add_f32 v%d, v%d, v%d" % (b + r, b + r, b + 4 + r))
            a("v_add_f32 v%d, v%d, v%d" % (b + 8 + r, b + 8 + r, b + 12 + r))
        for r in range(4):
            a("v_add_f32 v%d, v%d, v%d" % (b + r, b + r, b + 8 + r))
        a("v_cvt_pk_bf16_f32 v%d, v%d, v%d" % (b + 4, b, b + 1))
        a("v_cvt_pk_bf16_f32 v%d, v%d, v%d" % (b + 5, b + 2, b + 3))
        a("buffer_store_dwordx2 %s, v3, s[12:15], s41 offen" % vr(b + 4, 2))
    a.lab("L_k2_fin")
    stamp(a)
    stamp_dump(a, 6, "k2")
    a.lab("L_k2_end")
    a("s_endpgm")

def gen_stream(a):
    a.lab("stream_kernel")
    a("s_cmp_ge_u32 s2, 256")
    a("s_cbranch_scc1 L_st_end")
    a("s_lshr_b32 s3, s2, 7")
    a("s_and_b32 s4, s2, 127")
    a("s_mul_i32 s5, s3, 40")
    a("s_add_u32 s6, s0, s5")
    a("s_addc_u32 s7, s1, 0")
    a("s_load_dwordx4 s[8:11], s[6:7], 8")
    a("s_waitcnt lgkmcnt(0)")
    srd(a, 16, 8, SZ_KV)
    srd(a, 20, 10, SZ_KV)
    a("v_lshlrev_b32 v1, 4, v0")
    a("s_lshl_b32 s12, s4, 18")
    for i in range(16):
        fl = ""
        for x in sys.argv:
            if x.startswith("--sflag="):
                fl = " " + x.split("=")[1].replace("+", " ")
        a("buffer_load_dwordx4 %s, v1, s[16:19], s12 offen%s" % (vr(4 + 8 * (i % 8)), fl))
        a("buffer_load_dwordx4 %s, v1, s[20:23], s12 offen%s" % (vr(8 + 8 * (i % 8)), fl))
        a("s_add_u32 s12, s12, 16384")
    a("s_waitcnt vmcnt(0)")
    a.lab("L_st_end")
    a("s_endpgm")

def kd(a, name, vgpr, sgpr=102, acc=None):
    a.L.append(".p2align 6")
    a.L.append(".amdhsa_kernel %s" % name)
    a.L.append("  .amdhsa_next_free_vgpr %d" % vgpr)
    a.L.append("  .amdhsa_next_free_sgpr %d" % sgpr)
    a.L.append("  .amdhsa_accum_offset %d" % (acc if acc else (vgpr + 3) // 4 * 4))
    a.L.append("  .amdhsa_group_segment_fixed_size 0")
    a.L.append("  .amdhsa_kernarg_size 104")
    a.L.append("  .amdhsa_user_sgpr_count 2")
    a.L.append("  .amdhsa_user_sgpr_kernarg_segment_ptr 1")
    a.L.append("  .amdhsa_system_sgpr_workgroup_id_x 1")
    a.L.append(".end_amdhsa_kernel")

def main():
    hdr = open("cdna_kernels/%s.s.ref" % NAME).read().split("; Override launch geometry")[0]
    a = A()
    a.L.append(hdr.rstrip("\n"))
    if "--stream" in sys.argv:
        a.L.append("; @launch kernel=stream_kernel grid=(256,1,1) block=(1024,1,1) lds=0")
    a.L.append("; @launch kernel=attn_kernel grid=(256,1,1) block=(768,1,1) lds=%d" % LDS1)
    if "--twice" in sys.argv:
        a.L.append("; @launch kernel=attn_kernel grid=(256,1,1) block=(768,1,1) lds=%d" % LDS1)
    a.L.append("; @launch kernel=oproj_kernel grid=(256,1,1) block=(256,1,1) lds=126976")
    if "--k2twice" in sys.argv:
        a.L.append("; @launch kernel=oproj_kernel grid=(256,1,1) block=(256,1,1) lds=126976")
    a.L.append('.amdgcn_target "amdgcn-amd-amdhsa--gfx950"')
    a.L.append(".text")
    for nm, g in (("wprep_kernel", gen_k0), ("attn_kernel", gen_k1), ("oproj_kernel", gen_k2), ("stream_kernel", gen_stream)):
        a.L.append(".globl %s" % nm)
        a.L.append(".p2align 8")
        a.L.append(".type %s,@function" % nm)
        g(a)
    a.L.append('.section .rodata,"a"')
    kd(a, "wprep_kernel", 48)
    kd(a, "stream_kernel", 72)
    kd(a, "attn_kernel", 168)
    kd(a, "oproj_kernel", 228 + 120, acc=228)
    args = [x for x in sys.argv[1:] if not x.startswith("--")]
    out = args[0] if args else "cdna_kernels/%s.s" % NAME
    open(out, "w").write(a.text())

main()
```

```python
import sys

NAME = "concat_heads__gqa_block_cached__mha_block_cached__near_ridge"

class A:
    def __init__(self):
        self.L = []
    def __call__(self, s):
        self.L.append("    " + s)
    def lab(self, s):
        self.L.append(s + ":")
    def c(self, s):
        self.L.append("    ; " + s)
    def text(self):
        return "\n".join(self.L) + "\n"

def vr(b, n=4):
    return "v[%d:%d]" % (b, b + n - 1)
def sr(b, n=4):
    return "s[%d:%d]" % (b, b + n - 1)

WS_OF = 0
OF_BYTES = 2 * 96 * 128 * 1024
WS_WF = OF_BYTES
WF_BYTES = 2 * 40 * 128 * 1024
WS_BYTES = 268435456

SZ_X = 8 * 192 * 640 * 2
SZ_KV = 8 * 32 * 512 * 128 * 2
SZ_W = 640 * 4096 * 2
SZ_OUT = 8 * 192 * 1280 * 2

def srd(a, d, base, size):
    a("s_mov_b32 s%d, s%d" % (d, base))
    a("s_and_b32 s%d, s%d, 0xffff" % (d + 1, base + 1))
    a("s_mov_b32 s%d, 0x%x" % (d + 2, size))
    a("s_mov_b32 s%d, 0x00020000" % (d + 3))

def gen_k0(a):
    a.lab("wprep_kernel")
    a("s_cmp_ge_u32 s2, 256")
    a("s_cbranch_scc1 L_k0_end")
    a("s_lshr_b32 s3, s2, 7")
    a("s_and_b32 s4, s2, 127")
    a("s_mul_i32 s5, s3, 40")
    a("s_add_u32 s6, s0, s5")
    a("s_addc_u32 s7, s1, 0")
    a("s_load_dwordx2 s[8:9], s[6:7], 32")
    a("s_load_dwordx2 s[10:11], s[0:1], 96")
    a("v_lshrrev_b32 v1, 6, v0")
    a("v_and_b32 v0, 63, v0")
    a("s_nop 0")
    a("v_readfirstlane_b32 s12, v1")
    a("s_waitcnt lgkmcnt(0)")
    srd(a, 16, 8, SZ_W)
    srd(a, 20, 10, WS_BYTES)
    a("v_lshrrev_b32 v1, 4, v0")
    a("v_and_b32 v2, 15, v0")
    a("v_mul_u32_u24 v1, 5120, v1")
    a("v_lshl_add_u32 v1, v2, 4, v1")
    a("s_mul_i32 s13, s4, 40960")
    a("s_lshl_b32 s14, s12, 8")
    a("s_add_u32 s13, s13, s14")
    a("s_mul_i32 s15, s12, 8704")
    for P in range(8):
        a("s_add_u32 s24, s13, %d" % ((16 * (P // 4) + P % 4) * 1280))
        a("s_add_u32 m0, s15, %d" % (P * 1088))
        a("s_nop 0")
        a("buffer_load_dwordx4 v1, s[16:19], s24 offen lds")
    a("v_lshrrev_b32 v3, 5, v0")
    a("v_bfe_u32 v4, v0, 4, 1")
    a("v_bfe_u32 v5, v0, 2, 2")
    a("v_and_b32 v6, 3, v0")
    a("v_lshl_add_u32 v3, v3, 2, v5")
    a("v_mul_u32_u24 v3, 1088, v3")
    a("v_lshl_add_u32 v3, v4, 8, v3")
    a("v_lshl_add_u32 v3, v6, 3, v3")
    a("v_add_u32 v3, s15, v3")
    a("s_mul_i32 s25, s3, 40")
    a("s_lshl_b32 s26, s12, 3")
    a("s_add_u32 s25, s25, s26")
    a("s_lshl_b32 s25, s25, 7")
    a("s_add_u32 s25, s25, s4")
    a("s_lshl_b32 s25, s25, 10")
    a("s_add_u32 s25, s25, 0x%x" % WS_WF)
    a("v_lshlrev_b32 v7, 4, v0")
    a("s_waitcnt vmcnt(0)")
    for nt in range(8):
        a("ds_read_b64_tr_b16 %s, v3 offset:%d" % (vr(8 + 4 * nt, 2), nt * 32))
        a("ds_read_b64_tr_b16 %s, v3 offset:%d" % (vr(10 + 4 * nt, 2), nt * 32 + 512))
    a("s_waitcnt lgkmcnt(0)")
    for nt in range(8):
        a("buffer_store_dwordx4 %s, v7, s[20:23], s25 offen" % vr(8 + 4 * nt))
        a("s_add_u32 s25, s25, 0x%x" % (128 * 1024))
    a.lab("L_k0_end")
    a("s_endpgm")

SLOT = 34816
QPB = 29696
QP0 = 2 * SLOT
NQB = 3
LDS1 = 160 * 1024
V_ACC = 0
V_Q = 64
V_S = 96
V_NM = 112
V_KV = 128
V_KA0, V_KA1, V_VA, V_DK, V_L, V_T0, V_T1, V_T2 = 160, 161, 162, 163, 164, 165, 166, 167
V_FS = [64, 104]
V_XA0, V_XA1, V_WA, V_DQ = 144, 145, 146, 147
S_BLK, S_B, S_HP, S_W, S_HSEL, S_QT = 3, 4, 5, 6, 7, 44
S_X, S_K, S_V, S_WQ, S_WS = 20, 24, 28, 32, 40
S_D1, S_D2 = 48, 52
S_G1, S_G1S, S_G1A, S_L1, S_L1S = 56, 57, 58, 59, 60
S_G2, S_G2S, S_L2 = 61, 62, 63
S_T0, S_T1, S_T2, S_T3 = 64, 65, 66, 67
S_ROLE = 68
S_SC = 70

STAMPS = "--stamps" in sys.argv
_stamp_n = [0]
def stamp(a):
    if not STAMPS:
        return
    n = _stamp_n[0]; _stamp_n[0] += 1
    a("%s s[%d:%d]" % ("s_memrealtime" if "--rt" in sys.argv else "s_memtime", 72 + 2 * n, 73 + 2 * n))

def stamp_dump(a, S_W=6, tag="k1"):
    if not STAMPS:
        return
    n = _stamp_n[0]
    _stamp_n[0] = 0
    a("s_waitcnt lgkmcnt(0)")
    a("s_cmp_lg_u32 s2, 0")
    a("s_cbranch_scc1 L_sd_e_%s" % tag)
    if tag == "k1":
        a("s_and_b32 s64, s%d, 3" % S_W)
        a("s_cmp_lg_u32 s64, 0")
        a("s_cbranch_scc1 L_sd_e_%s" % tag)
    a("s_load_dwordx2 s[10:11], s[0:1], 88")
    a("s_waitcnt lgkmcnt(0)")
    srd(a, 12, 10, 256)
    a("s_lshl_b32 s64, s%d, %d" % (S_W, 4 if tag == "k1" else 6))
    a("v_mov_b32 v1, 0")
    for i in range(n):
        a("s_sub_u32 s65, s%d, s72" % (72 + 2 * i))
        a("v_mov_b32 v2, s65")
        a("buffer_store_dword v2, v1, s[12:15], s64 offen offset:%d" % (4 * i))
    a.lab("L_sd_e_%s" % tag)

TOUCH_STRIDE = 128
NTOUCH = 8
for x in sys.argv:
    if x.startswith("--touch="):
        TOUCH_STRIDE = int(x.split("=")[1])
    if x.startswith("--ntouch="):
        NTOUCH = int(x.split("=")[1])
TPACE = 1
NPRE = 2
XWT2 = "--xwt2" in sys.argv
KVIT = -1
KVD = 0
for x in sys.argv:
    if x.startswith("--kvit="):
        KVIT = int(x.split("=")[1])
    if x.startswith("--kvd="):
        KVD = int(x.split("=")[1])
QRD = [3, 3, 2, 2, 2, 2, 2, 2]
for x in sys.argv:
    if x.startswith("--qrd="):
        QRD = [int(c) for c in x.split("=")[1]]
QPRIO = None
for x in sys.argv:
    if x.startswith("--qprio="):
        QPRIO = int(x.split("=")[1])
WQF = ""
XF = ""
for x in sys.argv:
    if x.startswith("--wqf="):
        WQF = " " + x.split("=")[1].replace("+", " ")
    if x.startswith("--xf="):
        XF = " " + x.split("=")[1].replace("+", " ")
OSF = ""
for x in sys.argv:
    if x.startswith("--osf="):
        OSF = " " + x.split("=")[1].replace("+", " ")
TPER = 1
for x in sys.argv:
    if x.startswith("--tper="):
        TPER = int(x.split("=")[1])
XWT = "--noxwt" not in sys.argv
WOF = ""
for x in sys.argv:
    if x.startswith("--wof="):
        WOF = " " + x.split("=")[1].replace("+", " ")
WO_IT = 3
TSTART = 9
TF = " nt"
for x in sys.argv:
    if x.startswith("--woit="):
        WO_IT = int(x.split("=")[1])
    if x.startswith("--tstart="):
        TSTART = int(x.split("=")[1])
    if x.startswith("--tf="):
        TF = " " + x.split("=")[1].replace("+", " ")
KVF = ""
for x in sys.argv:
    if x.startswith("--kvf="):
        KVF = " " + x.split("=")[1].replace("+", " ")
PRIO = None
for x in sys.argv:
    if x.startswith("--prio="):
        PRIO = [int(c) for c in x.split("=")[1]]
for x in sys.argv:
    if x.startswith("--tpace="):
        TPACE = int(x.split("=")[1])
    if x.startswith("--npre="):
        NPRE = int(x.split("=")[1])
V_DW, V_WR, V_WST, V_TCH, V_WD = 148, 149, 150, 151, 152
S_WO = 36
S_WG, S_WL, S_WSO = 47, 45, 46
WTAIL = 4 * SLOT

def gen_k1(a):
    a.lab("attn_kernel")
    a("s_cmp_ge_u32 s2, 256")
    a("s_cbranch_scc1 L_k1_end")
    stamp(a)
    if "--wgt" in sys.argv:
        a("s_memrealtime s[100:101]")
    a("s_bfe_u32 s%d, s2, 0x10002" % S_BLK)
    a("s_lshr_b32 s%d, s2, 5" % S_B)
    a("s_and_b32 s%d, s2, 3" % S_HP)
    a("s_lshl_b32 s%d, s%d, 2" % (S_HP, S_HP))
    a("s_bfe_u32 s%d, s2, 0x20003" % S_T0)
    a("s_add_u32 s%d, s%d, s%d" % (S_HP, S_HP, S_T0))
    a("s_mul_i32 s%d, s%d, 40" % (S_T0, S_BLK))
    a("s_add_u32 s8, s0, s%d" % S_T0)
    a("s_addc_u32 s9, s1, 0")
    a("s_load_dwordx8 s[12:19], s[8:9], 0")
    a("s_load_dwordx2 s[10:11], s[0:1], 96")
    a("s_lshr_b32 s%d, s2, 7" % S_T1)
    a("s_mul_i32 s%d, s%d, 40" % (S_T0, S_T1))
    a("s_add_u32 s8, s0, s%d" % S_T0)
    a("s_addc_u32 s9, s1, 0")
    a("s_load_dwordx2 s[46:47], s[8:9], 32")
    a("v_lshrrev_b32 v1, 6, v0")
    a("v_and_b32 v0, 63, v0")
    a("s_nop 0")
    a("v_readfirstlane_b32 s%d, v1" % S_W)
    a("s_nop 3")
    a("s_cmp_ge_u32 s%d, 6" % S_W)
    a("s_cselect_b32 s%d, 1, 0" % S_HSEL)
    a("s_mul_i32 s%d, s%d, 6" % (S_T0, S_HSEL))
    a("s_sub_u32 s%d, s%d, s%d" % (S_QT, S_W, S_T0))
    a("s_lshr_b32 s%d, s%d, 2" % (S_ROLE, S_W))
    a("s_mov_b32 s%d, 0x3e0293ee" % S_SC)
    a("s_mov_b32 s%d, 0x3e0293ee" % (S_SC + 1))
    a("s_waitcnt lgkmcnt(0)")
    srd(a, S_X, 12, SZ_X)
    srd(a, S_K, 14, SZ_KV)
    srd(a, S_V, 16, SZ_KV)
    srd(a, S_WQ, 18, SZ_W)
    srd(a, S_WS, 10, WS_BYTES)
    srd(a, S_WO, 46, SZ_W)
    a("v_and_b32 v1, 31, v0")
    a("v_lshrrev_b32 v2, 5, v0")
    a("v_bfe_u32 v3, v0, 4, 1")
    a("v_bfe_u32 v4, v0, 2, 2")
    a("v_and_b32 v5, 3, v0")
    a("s_cmp_eq_u32 s%d, 0" % S_ROLE)
    for i in range(3):
        a("s_cselect_b32 s%d, s%d, s%d" % (S_D1 + i, S_X + i, S_WQ + i))
    a("s_mov_b32 s%d, 0x00020000" % (S_D1 + 3))
    a("s_mov_b32 s%d, 8192" % S_T0)
    a("s_cselect_b32 s%d, 20480, s%d" % (S_G1S, S_T0))
    a("s_cselect_b32 s%d, 64, 262144" % S_G1A)
    a("s_mov_b32 s%d, 1088" % S_T0)
    a("s_cselect_b32 s%d, 1024, s%d" % (S_L1S, S_T0))
    a("s_mul_i32 s%d, s%d, 192" % (S_T0, S_B))
    a("s_mul_i32 s%d, s%d, 48" % (S_T1, S_W))
    a("s_add_u32 s%d, s%d, s%d" % (S_T0, S_T0, S_T1))
    a("s_mul_i32 s%d, s%d, 1280" % (S_T0, S_T0))
    a("s_mul_i32 s%d, s%d, 3072" % (S_T1, S_W))
    a("s_add_u32 s%d, s%d, %d" % (S_T1, S_T1, QP0))
    a("s_sub_u32 s%d, s%d, 4" % (S_T2, S_W))
    a("s_lshl_b32 s%d, s%d, 16" % (S_T3, S_T2))
    a("s_lshl_b32 s98, s%d, 9" % S_HP)
    a("s_add_u32 s%d, s%d, s98" % (S_T3, S_T3))
    a("s_mul_i32 s%d, s%d, 4352" % (S_T2, S_T2))
    a("s_add_u32 s%d, s%d, %d" % (S_T2, S_T2, QP0 + 12288))
    a("s_cmp_eq_u32 s%d, 0" % S_ROLE)
    a("s_cselect_b32 s%d, s%d, s%d" % (S_G1, S_T0, S_T3))
    a("s_cselect_b32 s%d, s%d, s%d" % (S_L1, S_T1, S_T2))
    a("v_lshrrev_b32 v6, 2, v0")
    a("v_bfe_u32 v7, v0, 4, 2")
    a("v_xor_b32 v7, v5, v7")
    a("v_mul_u32_u24 v6, 1280, v6")
    a("v_lshl_add_u32 v6, v7, 4, v6")
    a("v_lshlrev_b32 v7, 15, v2")
    a("v_lshl_add_u32 v7, v1, 4, v7")
    a("s_cselect_b64 vcc, -1, 0")
    a("v_cndmask_b32 v%d, v7, v6, vcc" % V_DQ)
    a("s_sub_u32 s%d, s%d, 8" % (S_T0, S_W))
    a("s_and_b32 s%d, s%d, 1" % (S_T1, S_T0))
    a("s_lshl_b32 s%d, s%d, 5" % (S_T2, S_B))
    a("s_lshl_b32 s%d, s%d, 1" % (S_T3, S_HP))
    a("s_add_u32 s%d, s%d, s%d" % (S_T2, S_T2, S_T3))
    a("s_add_u32 s%d, s%d, s%d" % (S_T2, S_T2, S_T1))
    a("s_lshl_b32 s%d, s%d, 17" % (S_G2, S_T2))
    a("s_mul_i32 s%d, s%d, 8704" % (S_L2, S_T0))
    a("s_and_b32 s%d, s2, 127" % S_T1)
    a("s_mul_i32 s%d, s%d, 40960" % (S_WG, S_T1))
    a("s_lshl_b32 s%d, s%d, 8" % (S_T2, S_T0))
    a("s_add_u32 s%d, s%d, s%d" % (S_WG, S_WG, S_T2))
    a("s_lshr_b32 s%d, s2, 7" % S_T2)
    a("s_lshl_b32 s%d, s%d, 10" % (S_T2, S_T2))
    a("s_add_u32 s%d, s%d, s%d" % (S_T2, S_T2, S_T1))
    a("s_mul_i32 s%d, s%d, 5120" % (S_T2, S_T2))
    a("s_add_u32 s%d, s%d, 0x%x" % (S_WSO, S_T2, WS_WF))
    a("s_lshl_b32 s%d, s%d, 3" % (S_WL, S_T0))
    a("s_cmp_lt_u32 s%d, 10" % S_W)
    for i in range(3):
        a("s_cselect_b32 s%d, s%d, s%d" % (S_D2 + i, S_K + i, S_V + i))
    a("s_mov_b32 s%d, 0x00020000" % (S_D2 + 3))
    a("v_lshrrev_b32 v6, 4, v0")
    a("v_and_b32 v7, 15, v0")
    a("v_xor_b32 v8, v7, v6")
    a("v_lshlrev_b32 v8, 4, v8")
    a("v_lshl_add_u32 v8, v6, 8, v8")
    a("v_lshlrev_b32 v7, 4, v7")
    a("v_mul_u32_u24 v9, 5120, v6")
    a("v_add_u32 v%d, v9, v7" % V_DW)
    a("v_lshl_add_u32 v7, v6, 10, v7")
    a("s_cselect_b64 vcc, -1, 0")
    a("v_cndmask_b32 v%d, v7, v8, vcc" % V_DK)
    a("v_mul_u32_u24 v%d, %d, v0" % (V_TCH, TOUCH_STRIDE))

    r2 = []
    def r2_wait_n(tag):
        idx = max(i for i, t in enumerate(r2) if t == tag)
        return len(r2) - 1 - idx

    def qp_dma(stage):
        buf = stage % NQB
        lab = "L_qd_%d" % stage
        a("s_cmp_ge_u32 s%d, 2" % S_ROLE)
        a("s_cbranch_scc1 %s_e" % lab)
        a("s_mov_b32 s%d, s%d" % (S_T0, S_G1))
        a("s_add_u32 s%d, s%d, %d" % (S_T1, S_L1, buf * QPB))
        a("s_cmp_eq_u32 s%d, 0" % S_ROLE)
        a("s_cbranch_scc0 %s_w" % lab)
        for k in range(3):
            a("s_mov_b32 m0, s%d" % S_T1)
            a("s_nop 0")
            a("buffer_load_dwordx4 v%d, %s, s%d offen%s lds" % (V_DQ, sr(S_D1), S_T0, XF))
            if k < 2:
                a("s_add_u32 s%d, s%d, s%d" % (S_T0, S_T0, S_G1S))
                a("s_add_u32 s%d, s%d, s%d" % (S_T1, S_T1, S_L1S))
        a("s_branch %s_x" % lab)
        a.lab(lab + "_w")
        for k in range(4):
            a("s_mov_b32 m0, s%d" % S_T1)
            a("s_nop 0")
            a("buffer_load_dwordx4 v%d, %s, s%d offen%s lds" % (V_DQ, sr(S_D1), S_T0, WQF))
            if k < 3:
                a("s_add_u32 s%d, s%d, s%d" % (S_T0, S_T0, S_G1S))
                a("s_add_u32 s%d, s%d, s%d" % (S_T1, S_T1, S_L1S))
        a.lab(lab + "_x")
        a("s_add_u32 s%d, s%d, s%d" % (S_G1, S_G1, S_G1A))
        a.lab(lab + "_e")

    def r2_begin(tag):
        a("s_cmp_lt_u32 s%d, 2" % S_ROLE)
        a("s_cbranch_scc1 L_r2_%s" % tag)
    def r2_end(tag):
        a.lab("L_r2_%s" % tag)

    def kv_dma(stage, tag):
        slot = stage % 4
        lab = "L_kd_%s" % tag
        r2_begin(lab)
        a("s_cmp_lt_u32 s%d, 10" % S_W)
        a("s_cbranch_scc0 %s_v" % lab)
        for P in range(8):
            a("s_add_u32 s%d, s%d, %d" % (S_T0, S_G2, stage * 8192 + P * 1024))
            a("s_add_u32 m0, s%d, %d" % (S_L2, slot * SLOT + P * 1088))
            a("s_nop 0")
            a("buffer_load_dwordx4 v%d, %s, s%d offen%s lds" % (V_DK, sr(S_D2), S_T0, KVF))
        a("s_branch L_r2_%s" % lab)
        a.lab(lab + "_v")
        for P in range(8):
            a("s_add_u32 s%d, s%d, %d" % (S_T0, S_G2, stage * 8192 + (16 * (P // 4) + P % 4) * 256))
            a("s_add_u32 m0, s%d, %d" % (S_L2, slot * SLOT + P * 1088))
            a("s_nop 0")
            a("buffer_load_dwordx4 v%d, %s, s%d offen%s lds" % (V_DK, sr(S_D2), S_T0, KVF))
        r2_end(lab)
        r2.extend(["kv%d" % stage] * 8)

    def touch(stage, tag):
        n = 8192 // (64 * TOUCH_STRIDE)
        r2_begin("t" + tag)
        for k in range(n):
            a("s_add_u32 s%d, s%d, %d" % (S_T0, S_G2, stage * 8192 + k * 64 * TOUCH_STRIDE))
            a("buffer_load_dword v%d, v%d, %s, s%d offen%s" % (V_T0, V_TCH, sr(S_D2), S_T0, TF))
            r2.append("touch")
        r2_end("t" + tag)

    def wo_dma(tile4):
        for P in range(8):
            if tile4:
                a("s_add_u32 s%d, s%d, %d" % (S_T0, S_WG, 1024 + (16 * (P // 4) + P % 4) * 1280))
                a("s_mov_b32 m0, %d" % (WTAIL + P * 1088))
            else:
                a("s_add_u32 s%d, s%d, %d" % (S_T0, S_WG, (16 * (P // 4) + P % 4) * 1280))
                a("s_add_u32 m0, s%d, %d" % (S_L2, P * 1088))
            a("s_nop 0")
            a("buffer_load_dwordx4 v%d, %s, s%d offen%s lds" % (V_T0, sr(S_WO), S_T0, WOF))

    def wo_batch(bi, tile4):
        for q in range(2):
            nt = 2 * bi + q
            base = WTAIL if tile4 else 0
            a("ds_read_b64_tr_b16 %s, v%d offset:%d" % (vr(V_WD + 4 * q, 2), V_WR + (1 if tile4 else 0) * 0, nt * 32))
            a("ds_read_b64_tr_b16 %s, v%d offset:%d" % (vr(V_WD + 4 * q + 2, 2), V_WR, nt * 32 + 512))
        a("s_waitcnt lgkmcnt(0)")
        for q in range(2):
            nt = 2 * bi + q
            a("s_add_u32 s%d, s%d, %d" % (S_T0, S_WSO, (nt + (32 if tile4 else 0)) * 131072))
            a("buffer_store_dwordx4 %s, v%d, %s, s%d offen" % (vr(V_WD + 4 * q), V_WST, sr(S_WS), S_T0))

    def role_wait(tag, n0, n1, n2):
        lab = "L_rw_%s" % tag
        vals = [n0, n1, n2]
        for r in range(3):
            if vals[r] is None:
                continue
            a("s_cmp_lg_u32 s%d, %d" % (S_ROLE, r))
            a("s_cbranch_scc1 %s_%d" % (lab, r))
            a("s_waitcnt vmcnt(%d)" % vals[r])
            a.lab("%s_%d" % (lab, r))

    for st in range(3):
        qp_dma(st)
    a("s_barrier")
    if XWT:
        r2_begin("xwt")
        if XWT2:
            a("s_cmp_eq_u32 s%d, 8" % S_W)
            a("s_cbranch_scc0 L_xwt_n8")
            a("s_lshl_b32 s%d, s%d, 17" % (S_T0, S_B))
            a("s_lshl_b32 s%d, s%d, 9" % (S_T1, S_HP))
            a("s_add_u32 s%d, s%d, s%d" % (S_T0, S_T0, S_T1))
            a("v_lshrrev_b32 v6, 2, v0")
            a("v_lshlrev_b32 v6, 13, v6")
            a("v_lshl_add_u32 v6, v5, 7, v6")
            for k in range(5):
                a("buffer_load_dword v%d, v6, %s, s%d offen%s" % (V_T0, sr(S_WQ), S_T0, WQF))
                a("s_add_u32 s%d, s%d, %d" % (S_T0, S_T0, 128 * 8192))
            a("s_branch L_r2_xwt")
            a.lab("L_xwt_n8")
            a("s_cmp_eq_u32 s%d, 9" % S_W)
            a("s_cbranch_scc0 L_r2_xwt")
            a("s_bfe_u32 s%d, s2, 0x20003" % S_T0)
            a("s_mul_i32 s%d, s%d, 48" % (S_T0, S_T0))
            a("s_mul_i32 s%d, s%d, 192" % (S_T1, S_B))
            a("s_add_u32 s%d, s%d, s%d" % (S_T0, S_T0, S_T1))
            a("s_mul_i32 s%d, s%d, 1280" % (S_T0, S_T0))
            a("v_min_u32 v6, 47, v0")
            a("v_mul_u32_u24 v6, 1280, v6")
            for i in range(10):
                a("buffer_load_dword v%d, v6, %s, s%d offen offset:%d" % (V_T0, sr(S_X), S_T0, i * 128))
        else:
            a("s_sub_u32 s%d, s%d, 8" % (S_T3, S_W))
            a("s_bfe_u32 s%d, s2, 0x20003" % S_T0)
            a("s_mul_i32 s%d, s%d, 48" % (S_T0, S_T0))
            a("s_mul_i32 s%d, s%d, 192" % (S_T1, S_B))
            a("s_add_u32 s%d, s%d, s%d" % (S_T0, S_T0, S_T1))
            a("s_mul_i32 s%d, s%d, 1280" % (S_T0, S_T0))
            a("s_lshl_b32 s%d, s%d, 7" % (S_T1, S_T3))
            a("s_add_u32 s%d, s%d, s%d" % (S_T0, S_T0, S_T1))
            a("v_min_u32 v6, 47, v0")
            a("v_mul_u32_u24 v6, 1280, v6")
            a("buffer_load_dword v%d, v6, %s, s%d offen" % (V_T0, sr(S_X), S_T0))
            a("buffer_load_dword v%d, v6, %s, s%d offen offset:512" % (V_T0, sr(S_X), S_T0))
            a("s_cmp_ge_u32 s%d, 2" % S_T3)
            a("s_cbranch_scc1 L_xwt_skip")
            a("buffer_load_dword v%d, v6, %s, s%d offen offset:1024" % (V_T0, sr(S_X), S_T0))
            a.lab("L_xwt_skip")
            a("s_mul_i32 s%d, s%d, 80" % (S_T0, S_B))
            a("s_lshl_b32 s%d, s%d, 4" % (S_T1, S_T3))
            a("s_add_u32 s%d, s%d, s%d" % (S_T0, S_T0, S_T1))
            a("s_lshl_b32 s%d, s%d, 13" % (S_T0, S_T0))
            a("s_lshl_b32 s%d, s%d, 9" % (S_T1, S_HP))
            a("s_add_u32 s%d, s%d, s%d" % (S_T0, S_T0, S_T1))
            a("v_lshrrev_b32 v6, 2, v0")
            a("v_lshlrev_b32 v6, 13, v6")
            a("v_lshl_add_u32 v6, v5, 7, v6")
            a("buffer_load_dword v%d, v6, %s, s%d offen%s" % (V_T0, sr(S_WQ), S_T0, WQF))
            a("s_cmp_lg_u32 s%d, 0" % S_T3)
            a("s_cbranch_scc1 L_xwt_skip2")
            a("s_add_u32 s%d, s%d, %d" % (S_T0, S_T0, 64 * 8192))
            a("buffer_load_dword v%d, v6, %s, s%d offen%s" % (V_T0, sr(S_WQ), S_T0, WQF))
            a.lab("L_xwt_skip2")
        r2_end("xwt")
    if KVIT < 0:
        kv_dma(0, "p0")
        kv_dma(1, "p1")
    tq = list(range(2, 2 + NTOUCH))
    a("s_lshl_b32 s%d, s%d, 5" % (S_T0, S_QT))
    a("v_add_u32 v6, s%d, v1" % S_T0)
    a("v_bfe_u32 v7, v6, 2, 2")
    a("v_xor_b32 v8, v2, v7")
    a("v_lshlrev_b32 v6, 6, v6")
    a("v_lshl_add_u32 v%d, v8, 4, v6" % V_XA0)
    a("v_xor_b32 v8, 2, v8")
    a("v_lshl_add_u32 v%d, v8, 4, v6" % V_XA1)
    a("v_add_u32 v%d, %d, v%d" % (V_XA0, QP0, V_XA0))
    a("v_add_u32 v%d, %d, v%d" % (V_XA1, QP0, V_XA1))
    a("v_lshl_add_u32 v6, v2, 2, v4")
    a("v_mul_u32_u24 v6, 1088, v6")
    a("v_lshl_add_u32 v6, v3, 5, v6")
    a("v_and_b32 v7, 1, v5")
    a("v_lshl_add_u32 v6, v7, 4, v6")
    a("v_lshrrev_b32 v7, 1, v5")
    a("v_lshl_add_u32 v6, v7, 3, v6")
    a("s_lshl_b32 s%d, s%d, 8" % (S_T0, S_HSEL))
    a("s_add_u32 s%d, s%d, %d" % (S_T0, S_T0, QP0 + 12288))
    a("v_add_u32 v%d, s%d, v6" % (V_WA, S_T0))
    a("v_lshrrev_b32 v6, 2, v1")
    a("v_mul_u32_u24 v6, 1088, v6")
    a("v_and_b32 v7, 3, v1")
    a("v_lshl_add_u32 v6, v7, 8, v6")
    a("v_xor_b32 v8, v2, v7")
    a("s_mul_i32 s%d, s%d, 8704" % (S_T0, S_HSEL))
    a("v_add_u32 v6, s%d, v6" % S_T0)
    a("v_lshl_add_u32 v%d, v8, 4, v6" % V_KA0)
    a("v_xor_b32 v8, 2, v8")
    a("v_lshl_add_u32 v%d, v8, 4, v6" % V_KA1)
    a("v_mul_u32_u24 v6, 1088, v4")
    a("v_lshl_add_u32 v6, v2, 8, v6")
    a("v_lshl_add_u32 v6, v3, 5, v6")
    a("v_lshl_add_u32 v6, v5, 3, v6")
    a("s_add_u32 s%d, s%d, 17408" % (S_T0, S_T0))
    a("v_add_u32 v%d, s%d, v6" % (V_VA, S_T0))
    a("v_lshl_add_u32 v6, v2, 2, v4")
    a("v_mul_u32_u24 v6, 1088, v6")
    a("v_lshl_add_u32 v6, v3, 8, v6")
    a("v_lshl_add_u32 v6, v5, 3, v6")
    a("v_add_u32 v%d, s%d, v6" % (V_WR, S_L2))
    a("v_lshlrev_b32 v%d, 4, v0" % V_WST)
    a("v_mov_b32 v%d, v0" % V_T2)

    def qp_reads(stage, fs):
        base = V_FS[fs]
        L = []
        for ks in range(2):
            L.append("ds_read_b128 %s, v%d" % (vr(base + 4 * ks), V_XA0 + ks))
            for t in range(4):
                d = base + 8 + (ks * 4 + t) * 4
                for u in range(2):
                    L.append("ds_read_b64_tr_b16 %s, v%d offset:%d" % (vr(d + 2 * u, 2), V_WA, ks * 8704 + u * 512 + t * 64))
        return L

    def qp_addr_adv(stage_from):
        d = QPB if (stage_from % NQB) != NQB - 1 else -(NQB - 1) * QPB
        for r in (V_XA0, V_XA1, V_WA):
            if d > 0:
                a("v_add_u32 v%d, %d, v%d" % (r, d, r))
            else:
                a("v_subrev_u32 v%d, %d, v%d" % (r, -d, r))

    role_wait("pre", 6, 8, None)
    a("s_barrier")
    stamp(a)
    for ins in qp_reads(0, 0):
        a(ins)
    qp_addr_adv(0)
    NQ = 20
    for j in range(NQ):
        a.c("---- qproj iter %d" % j)
        if j in (5, 10, 15):
            stamp(a)
        if j + 1 <= NQ - 1:
            rem = 1 if j + 2 <= NQ - 1 else 0
            role_wait("q%d" % j, 3 * rem, 4 * rem, None)
        a("s_waitcnt lgkmcnt(0)")
        a("s_barrier")
        if j + 3 < NQ:
            qp_dma(j + 3)
        if tq and j >= TSTART and (j - TSTART) % TPACE == 0:
            for _i in range(TPER):
                if tq: touch(tq.pop(0), "q%d_%d" % (j, _i))
        if j == KVIT:
            kv_dma(0, "p0")
        if j == KVIT + KVD:
            kv_dma(1, "p1")
        if j == 19:
            kv_dma(2, "q19a")
            kv_dma(3, "q19b")
        if QPRIO is not None: a("s_setprio %d" % QPRIO)
        a("s_waitcnt lgkmcnt(0)")
        fs = j & 1
        base = V_FS[fs]
        rd = qp_reads(j + 1, fs ^ 1) if j + 1 < NQ else []
        mf = []
        for ks in range(2):
            for t in range(4):
                c = "0" if (j == 0 and ks == 0) else vr(V_ACC + 16 * t, 16)
                mf.append("v_mfma_f32_32x32x16_bf16 %s, %s, %s, %s" % (
                    vr(V_ACC + 16 * t, 16), vr(base + 8 + (ks * 4 + t) * 4), vr(base + 4 * ks), c))
        ri = 0
        for m in range(8):
            a(mf[m])
            n = QRD[m]
            for _ in range(n):
                if ri < len(rd):
                    a(rd[ri]); ri += 1
        while ri < len(rd):
            a(rd[ri]); ri += 1
        if j + 1 < NQ:
            qp_addr_adv(j + 1)
        if QPRIO is not None: a("s_setprio 0")
    a.c("---- q convert")
    stamp(a)
    role_wait("a_pre2", None, None, r2_wait_n("kv0"))
    a("s_nop 15")
    for t in range(4):
        for p in range(8):
            i0 = V_ACC + 16 * t + 2 * p
            a("v_pk_mul_f32 %s, %s, %s" % (vr(i0, 2), vr(i0, 2), sr(S_SC, 2)))
            a("v_cvt_pk_bf16_f32 v%d, v%d, v%d" % (V_Q + t * 8 + p, i0, i0 + 1))
    a("v_mov_b32 v%d, 0" % V_L)

    def k_reads(stage):
        L = []
        for s in range(8):
            L.append("ds_read_b128 %s, v%d offset:%d" % (vr(V_KV + 4 * s), V_KA0 + (s & 1), (s >> 1) * 64))
        return L
    def v_reads():
        L = []
        for sl in range(2):
            for dt in range(4):
                f = sl * 4 + dt
                for u in range(2):
                    L.append("ds_read_b64_tr_b16 %s, v%d offset:%d" % (vr(V_KV + 4 * f + 2 * u, 2), V_VA, sl * 4352 + u * 512 + dt * 64))
        return L
    def slot_adv(regs, stage_from):
        d = SLOT if (stage_from % 4) != 3 else -3 * SLOT
        for r in regs:
            if d > 0:
                a("v_add_u32 v%d, %d, v%d" % (r, d, r))
            else:
                a("v_subrev_u32 v%d, %d, v%d" % (r, -d, r))

    a("s_barrier")
    for ins in k_reads(0):
        a(ins)
    slot_adv((V_KA0, V_KA1), 0)
    NT = 16
    rare = []
    for t in range(NT):
        a.c("---- attn stage %d" % t)
        if t in (0, 1, 4, 8, 12):
            stamp(a)
        if t + 1 < NT:
            role_wait("a%d" % t, None, None, r2_wait_n("kv%d" % (t + 1)))
        a("s_barrier")
        if t >= 1 and t + 3 < NT:
            kv_dma(t + 3, "a%d" % t)
        if t == 13:
            a("v_lshrrev_b32 v%d, 4, v%d" % (V_T0, V_T2))
            a("v_and_b32 v%d, 15, v%d" % (V_T1, V_T2))
            a("v_mul_u32_u24 v%d, 5120, v%d" % (V_T0, V_T0))
            a("v_lshl_add_u32 v%d, v%d, 4, v%d" % (V_T0, V_T1, V_T0))
            r2_begin("wo")
            a("s_cmp_lg_u32 s%d, 8" % S_W)
            a("s_cbranch_scc1 L_wo4_skip")
            wo_dma(True)
            a.lab("L_wo4_skip")
            wo_dma(False)
            r2_end("wo")
            r2.extend(["wo"] * 8)
        if PRIO: a("s_setprio %d" % PRIO[0])
        a("s_waitcnt lgkmcnt(0)")
        vrd = v_reads()
        S = V_S
        for s in range(8):
            c = ("0" if t == 0 else vr(V_NM, 16)) if s == 0 else vr(S, 16)
            a("v_mfma_f32_32x32x16_bf16 %s, %s, %s, %s" % (vr(S, 16), vr(V_KV + 4 * s), vr(V_Q + 4 * s), c))
            if s >= 1:
                a(vrd[2 * (s - 1)]); a(vrd[2 * (s - 1) + 1])
        a(vrd[14]); a(vrd[15])
        slot_adv((V_VA,), t)
        if PRIO: a("s_setprio %d" % PRIO[1])
        a("s_nop 7")
        a("s_nop 1")
        T0, T1 = V_T0, V_T1
        a("v_max3_f32 v%d, v%d, v%d, v%d" % (T0, S, S + 1, S + 2))
        a("v_max3_f32 v%d, v%d, v%d, v%d" % (T1, S + 3, S + 4, S + 5))
        a("v_max3_f32 v%d, v%d, v%d, v%d" % (T0, T0, S + 6, S + 7))
        a("v_max3_f32 v%d, v%d, v%d, v%d" % (T1, T1, S + 8, S + 9))
        a("v_max3_f32 v%d, v%d, v%d, v%d" % (T0, T0, S + 10, S + 11))
        a("v_max3_f32 v%d, v%d, v%d, v%d" % (T1, T1, S + 12, S + 13))
        a("v_max3_f32 v%d, v%d, v%d, v%d" % (T0, T0, S + 14, S + 15))
        a("v_max_f32 v%d, v%d, v%d" % (T0, T0, T1))
        if t == 0:
            a("v_mov_b32 v%d, v%d" % (T1, T0))
            a("s_nop 1")
            a("v_permlane32_swap_b32 v%d, v%d" % (T0, T1))
            a("s_nop 1")
            a("v_max_f32 v%d, v%d, v%d" % (T0, T0, T1))
            for i in range(16):
                a("v_sub_f32 v%d, v%d, v%d" % (S + i, S + i, T0))
            for i in range(16):
                a("v_sub_f32 v%d, 0, v%d" % (V_NM + i, T0))
        else:
            a("v_cmp_lt_f32 vcc, 0x41000000, v%d" % T0)
            a("s_cbranch_vccnz L_rare_%d" % t)
            a.lab("L_back_%d" % t)
            R = []
            R.append("L_rare_%d:" % t)
            R.append("    v_mov_b32 v%d, v%d" % (T1, T0))
            R.append("    s_nop 1")
            R.append("    v_permlane32_swap_b32 v%d, v%d" % (T0, T1))
            R.append("    s_nop 1")
            R.append("    v_max_f32 v%d, v%d, v%d" % (T0, T0, T1))
            R.append("    v_max_f32 v%d, 0, v%d" % (T0, T0))
            R.append("    v_exp_f32 v%d, -v%d" % (T1, T0))
            for i in range(16):
                R.append("    v_sub_f32 v%d, v%d, v%d" % (S + i, S + i, T0))
            for i in range(16):
                R.append("    v_sub_f32 v%d, v%d, v%d" % (V_NM + i, V_NM + i, T0))
            for i in range(64):
                R.append("    v_mul_f32 v%d, v%d, v%d" % (V_ACC + i, V_ACC + i, T1))
            R.append("    v_mul_f32 v%d, v%d, v%d" % (V_L, V_L, T1))
            R.append("    s_nop 1")
            R.append("    s_branch L_back_%d" % t)
            rare += R
        for i in range(16):
            a("v_exp_f32 v%d, v%d" % (S + i, S + i))
        for i in range(16):
            a("v_add_f32 v%d, v%d, v%d" % (V_L, V_L, S + i))
        for p in range(4):
            a("v_cvt_pk_bf16_f32 v%d, v%d, v%d" % (S + p, S + 2 * p, S + 2 * p + 1))
        for p in range(4):
            a("v_cvt_pk_bf16_f32 v%d, v%d, v%d" % (S + 8 + p, S + 8 + 2 * p, S + 8 + 2 * p + 1))
        if PRIO: a("s_setprio %d" % PRIO[2])
        a("s_waitcnt lgkmcnt(0)")
        krd = k_reads(t + 1) if t + 1 < NT else []
        for f in range(8):
            sl, dt = f // 4, f % 4
            c = "0" if (t == 0 and sl == 0) else vr(V_ACC + 16 * dt, 16)
            a("v_mfma_f32_32x32x16_bf16 %s, %s, %s, %s" % (vr(V_ACC + 16 * dt, 16), vr(V_KV + 4 * f), vr(S + 8 * sl), c))
            if f >= 1 and krd:
                a(krd[f - 1])
        if krd:
            a(krd[7])
            slot_adv((V_KA0, V_KA1), t + 1)
    a.c("---- epilogue")
    stamp(a)
    T0, T1 = V_T0, V_T1
    a("v_mov_b32 v%d, v%d" % (T1, V_L))
    a("s_nop 1")
    a("v_permlane32_swap_b32 v%d, v%d" % (V_L, T1))
    a("s_nop 1")
    a("v_add_f32 v%d, v%d, v%d" % (V_L, V_L, T1))
    a("v_rcp_f32 v%d, v%d" % (V_L, V_L))
    a("s_lshl_b32 s%d, s%d, 4" % (S_T0, S_BLK))
    a("s_lshl_b32 s%d, s%d, 1" % (S_T1, S_B))
    a("s_add_u32 s%d, s%d, s%d" % (S_T0, S_T0, S_T1))
    a("s_cmp_ge_u32 s%d, 3" % S_QT)
    a("s_cselect_b32 s%d, 1, 0" % S_T1)
    a("s_add_u32 s%d, s%d, s%d" % (S_T0, S_T0, S_T1))
    a("s_mul_i32 s%d, s%d, 3" % (S_T1, S_T1))
    a("s_sub_u32 s%d, s%d, s%d" % (S_T2, S_QT, S_T1))
    a("s_lshl_b32 s%d, s%d, 7" % (S_T0, S_T0))
    a("s_lshl_b32 s%d, s%d, 1" % (S_T1, S_HP))
    a("s_add_u32 s%d, s%d, s%d" % (S_T1, S_T1, S_HSEL))
    a("s_lshl_b32 s%d, s%d, 2" % (S_T1, S_T1))
    a("s_add_u32 s%d, s%d, s%d" % (S_T0, S_T0, S_T1))
    a("s_mul_i32 s%d, s%d, 6144" % (S_T0, S_T0))
    a("s_lshl_b32 s%d, s%d, 11" % (S_T2, S_T2))
    a("s_add_u32 s%d, s%d, s%d" % (S_T0, S_T0, S_T2))
    ln = V_T2
    a("v_and_b32 v%d, 15, v%d" % (T0, ln))
    a("v_bfe_u32 v%d, v%d, 4, 1" % (T1, ln))
    a("v_lshlrev_b32 v%d, 10, v%d" % (T1, T1))
    a("v_lshl_add_u32 v%d, v%d, 4, v%d" % (T0, T0, T1))
    a("v_lshrrev_b32 v%d, 5, v%d" % (T1, ln))
    a("v_lshl_add_u32 v%d, v%d, 8, v%d" % (T0, T1, T0))
    a("s_nop 7")
    for dt in range(4):
        for half in range(2):
            b0 = V_ACC + 16 * dt + 8 * half
            d = V_Q + (dt * 2 + half) * 4
            for p in range(4):
                a("v_mul_f32 v%d, v%d, v%d" % (b0 + 2 * p, b0 + 2 * p, V_L))
                a("v_mul_f32 v%d, v%d, v%d" % (b0 + 2 * p + 1, b0 + 2 * p + 1, V_L))
                a("v_cvt_pk_bf16_f32 v%d, v%d, v%d" % (d + p, b0 + 2 * p, b0 + 2 * p + 1))
            if "--noostore" not in sys.argv:
                a("buffer_store_dwordx4 %s, v%d, %s, s%d offen offset:%d%s" % (vr(d), T0, sr(S_WS), S_T0, half * 512, OSF))
        a("s_add_u32 s%d, s%d, 6144" % (S_T0, S_T0))
    r2_begin("wofin")
    ln = V_T2
    a("v_lshrrev_b32 v1, 5, v%d" % ln)
    a("v_bfe_u32 v2, v%d, 4, 1" % ln)
    a("v_bfe_u32 v3, v%d, 2, 2" % ln)
    a("v_and_b32 v4, 3, v%d" % ln)
    a("v_lshl_add_u32 v1, v1, 2, v3")
    a("v_mul_u32_u24 v1, 1088, v1")
    a("v_lshl_add_u32 v1, v2, 8, v1")
    a("v_lshl_add_u32 v1, v4, 3, v1")
    a("v_add_u32 v2, s%d, v1" % S_L2)
    a("v_add_u32 v3, %d, v1" % WTAIL)
    a("v_lshlrev_b32 v4, 4, v%d" % ln)
    a("s_waitcnt vmcnt(%d)" % (0 if "--noostore" in sys.argv else 8))
    for tile4 in (False, True):
        if tile4:
            a("s_cmp_lg_u32 s%d, 8" % S_W)
            a("s_cbranch_scc1 L_r2_wofin")
        for nt in range(8):
            a("ds_read_b64_tr_b16 %s, v%d offset:%d" % (vr(8 + 4 * nt, 2), 3 if tile4 else 2, nt * 32))
            a("ds_read_b64_tr_b16 %s, v%d offset:%d" % (vr(10 + 4 * nt, 2), 3 if tile4 else 2, nt * 32 + 512))
        a("s_waitcnt lgkmcnt(0)")
        for nt in range(8):
            if tile4:
                n_ = 32 + nt
                a("s_add_u32 s%d, s%d, %d" % (S_T0, S_WSO, (n_ // 5) * 128 * 5120 + (n_ % 5) * 1024))
            else:
                a("s_add_u32 s%d, s%d, %d" % (S_T1, S_WL, nt))
                a("s_mul_i32 s%d, s%d, 52" % (S_T2, S_T1))
                a("s_lshr_b32 s%d, s%d, 8" % (S_T2, S_T2))
                a("s_mul_i32 s%d, s%d, 5" % (S_T3, S_T2))
                a("s_sub_u32 s%d, s%d, s%d" % (S_T1, S_T1, S_T3))
                a("s_mul_i32 s%d, s%d, %d" % (S_T2, S_T2, 128 * 5120))
                a("s_lshl_b32 s%d, s%d, 10" % (S_T1, S_T1))
                a("s_add_u32 s%d, s%d, s%d" % (S_T0, S_WSO, S_T2))
                a("s_add_u32 s%d, s%d, s%d" % (S_T0, S_T0, S_T1))
            a("buffer_store_dwordx4 %s, v4, %s, s%d offen%s" % (vr(8 + 4 * nt), sr(S_WS), S_T0, OSF))
        a("s_nop 1")
    r2_end("wofin")
    if "--wgt" in sys.argv:
        a("s_waitcnt vmcnt(0)")
        a("s_memrealtime s[98:99]")
        a("s_waitcnt lgkmcnt(0)")
        a("s_cmp_lg_u32 s%d, 0" % S_W)
        a("s_cbranch_scc1 L_wgt_e")
        a("s_lshl_b32 s64, s2, 3")
        a("s_add_u32 s64, s64, 0x4000000")
        a("v_mov_b32 v1, 0")
        a("v_mov_b32 v2, s100")
        a("v_mov_b32 v3, s98")
        a("buffer_store_dwordx2 v[2:3], v1, %s, s64 offen" % sr(S_WS))
        a.lab("L_wgt_e")
    stamp(a)
    stamp_dump(a)
    a.lab("L_k1_end")
    a("s_endpgm")
    a.L += rare

K2SP = 0
for x in sys.argv:
    if x.startswith("--k2sp="):
        K2SP = int(x.split("=")[1])
def gen_k2(a):
    a.lab("oproj_kernel")
    a("s_cmp_ge_u32 s2, 256")
    a("s_cbranch_scc1 L_k2_end")
    stamp(a)
    a("s_load_dwordx2 s[8:9], s[0:1], 80")
    a("s_load_dwordx2 s[10:11], s[0:1], 96")
    a("s_and_b32 s3, s2, 7")
    a("s_lshr_b32 s4, s2, 3")
    a("s_and_b32 s5, s4, 7")
    a("s_lshr_b32 s4, s4, 3")
    a("s_lshl_b32 s3, s3, 2")
    a("s_add_u32 s4, s4, s3")
    a("s_lshr_b32 s3, s4, 4")
    a("s_and_b32 s4, s4, 15")
    if "--k2same" in sys.argv:
        a("s_mov_b32 s42, s3"); a("s_mov_b32 s43, s4"); a("s_mov_b32 s44, s5")
    a("v_lshrrev_b32 v1, 6, v0")
    a("v_and_b32 v0, 63, v0")
    a("s_nop 0")
    a("v_readfirstlane_b32 s6, v1")
    a("s_waitcnt lgkmcnt(0)")
    srd(a, 12, 8, SZ_OUT)
    srd(a, 16, 10, WS_BYTES)
    a("v_lshlrev_b32 v1, 4, v0")
    if "--k2same" in sys.argv:
        a("s_mov_b32 s3, 0"); a("s_mov_b32 s4, 0"); a("s_mov_b32 s5, 0")
    a("s_lshl_b32 s20, s3, 4")
    a("s_add_u32 s20, s20, s4")
    a("s_lshl_b32 s20, s20, 7")
    a("s_lshl_b32 s21, s6, 5")
    a("s_add_u32 s20, s20, s21")
    a("s_mul_i32 s24, s20, 6144")
    a("s_add_u32 s25, s24, 4096")
    a("s_lshl_b32 s22, s3, 3")
    a("s_add_u32 s22, s22, s5")
    a("s_lshl_b32 s22, s22, 7")
    a("s_add_u32 s22, s22, s21")
    a("s_mul_i32 s26, s22, 5120")
    a("s_add_u32 s26, s26, 0x%x" % WS_WF)
    a("s_add_u32 s27, s26, 4096")
    ACC = 0
    FB = 8
    NB = 5
    def ar(b, n=4):
        return "a[%d:%d]" % (b, b + n - 1)
    NK = 32
    def loads(ks):
        b = FB + 44 * (ks % NB)
        L = []
        for f in range(6):
            L.append("buffer_load_dwordx4 %s, v1, s[16:19], s%d offen offset:%d" % (vr(b + 4 * f), 24 + f // 4, (f % 4) * 1024))
        for f in range(5):
            L.append("buffer_load_dwordx4 %s, v1, s[16:19], s%d offen offset:%d" % (vr(b + 24 + 4 * f), 26 + f // 4, (f % 4) * 1024))
        if "--k2noload" in sys.argv and ks >= 4:
            L = []
        L.append("s_add_u32 s24, s24, 6144")
        L.append("s_add_u32 s25, s25, 6144")
        L.append("s_add_u32 s26, s26, 5120")
        L.append("s_add_u32 s27, s27, 5120")
        return L
    for ks in range(NB - 1):
        for ins in loads(ks):
            a(ins)
    for ks in range(NK):
        nxt = ks + NB - 1
        ld = loads(nxt) if nxt < NK else []
        outstanding_after = min(NK - 1, ks + NB - 2) - ks
        a("s_waitcnt vmcnt(%d)" % (11 * outstanding_after))
        if ks in (0, 1, 8, 16, 24):
            stamp(a)
        b = FB + 44 * (ks % NB)
        li = 0
        m = 0
        for j in range(5):
            for i in range(6):
                if "--k2nomfma" not in sys.argv:
                    a("v_mfma_f32_16x16x32_bf16 %s, %s, %s, %s" % (ar(ACC + 4 * (j * 6 + i)), vr(b + 24 + 4 * j), vr(b + 4 * i), "0" if ks == 0 else ar(ACC + 4 * (j * 6 + i))))
                m += 1
                if K2SP:
                    if li < len(ld) and m % K2SP == 0:
                        a(ld[li]); li += 1
                elif li < len(ld) and m >= 2:
                    a(ld[li]); li += 1
        while li < len(ld):
            a(ld[li]); li += 1
    stamp(a)
    a("s_nop 15")
    a("s_mul_i32 s36, s6, 30720")
    a("v_add_u32 v2, s36, v1")
    for tl in range(30):
        a("ds_write_b128 v2, %s offset:%d" % (ar(ACC + 4 * tl), tl * 1024))
    a("s_lshl_b32 s36, s6, 10")
    a("v_add_u32 v2, s36, v1")
    a("v_add_u32 v5, 61440, v2")
    a("v_and_b32 v3, 15, v0")
    a("v_mul_u32_u24 v3, 2560, v3")
    a("v_lshrrev_b32 v4, 4, v0")
    a("v_lshl_add_u32 v3, v4, 3, v3")
    a("s_mul_i32 s37, s4, %d" % (96 * 2560))
    a("s_mul_i32 s38, s3, 1280")
    a("s_add_u32 s37, s37, s38")
    a("s_mul_i32 s38, s5, 160")
    a("s_add_u32 s37, s37, s38")
    a("s_waitcnt lgkmcnt(0)")
    a("s_barrier")
    stamp(a)
    for n in range(8):
        for src_ in range(4):
            a("ds_read_b128 %s, v%d offset:%d" % (vr(FB + 16 * n + 4 * src_), 2 if src_ < 2 else 5, (src_ % 2) * 30720 + n * 4096))
    for n in range(8):
        if n == 7:
            a("s_cmp_ge_u32 s6, 2")
            a("s_cbranch_scc1 L_k2_fin")
        a("s_add_u32 s39, s6, %d" % (4 * n))
        a("s_mul_i32 s40, s39, 43")
        a("s_lshr_b32 s40, s40, 8")
        a("s_mul_i32 s41, s40, 6")
        a("s_sub_u32 s41, s39, s41")
        a("s_mul_i32 s41, s41, %d" % (16 * 2560))
        a("s_lshl_b32 s40, s40, 5")
        a("s_add_u32 s41, s41, s40")
        a("s_add_u32 s41, s41, s37")
        a("s_waitcnt lgkmcnt(%d)" % min(15, 4 * (7 - n)))
        b = FB + 16 * n
        for r in range(4):
            a("v_add_f32 v%d, v%d, v%d" % (b + r, b + r, b + 4 + r))
            a("v_add_f32 v%d, v%d, v%d" % (b + 8 + r, b + 8 + r, b + 12 + r))
        for r in range(4):
            a("v_add_f32 v%d, v%d, v%d" % (b + r, b + r, b + 8 + r))
        a("v_cvt_pk_bf16_f32 v%d, v%d, v%d" % (b + 4, b, b + 1))
        a("v_cvt_pk_bf16_f32 v%d, v%d, v%d" % (b + 5, b + 2, b + 3))
        a("buffer_store_dwordx2 %s, v3, s[12:15], s41 offen" % vr(b + 4, 2))
    a.lab("L_k2_fin")
    stamp(a)
    stamp_dump(a, 6, "k2")
    a.lab("L_k2_end")
    a("s_endpgm")

def gen_stream(a):
    a.lab("stream_kernel")
    a("s_cmp_ge_u32 s2, 256")
    a("s_cbranch_scc1 L_st_end")
    a("s_lshr_b32 s3, s2, 7")
    a("s_and_b32 s4, s2, 127")
    a("s_mul_i32 s5, s3, 40")
    a("s_add_u32 s6, s0, s5")
    a("s_addc_u32 s7, s1, 0")
    a("s_load_dwordx4 s[8:11], s[6:7], 8")
    a("s_waitcnt lgkmcnt(0)")
    srd(a, 16, 8, SZ_KV)
    srd(a, 20, 10, SZ_KV)
    a("v_lshlrev_b32 v1, 4, v0")
    a("s_lshl_b32 s12, s4, 18")
    for i in range(16):
        fl = ""
        for x in sys.argv:
            if x.startswith("--sflag="):
                fl = " " + x.split("=")[1].replace("+", " ")
        a("buffer_load_dwordx4 %s, v1, s[16:19], s12 offen%s" % (vr(4 + 8 * (i % 8)), fl))
        a("buffer_load_dwordx4 %s, v1, s[20:23], s12 offen%s" % (vr(8 + 8 * (i % 8)), fl))
        a("s_add_u32 s12, s12, 16384")
    a("s_waitcnt vmcnt(0)")
    a.lab("L_st_end")
    a("s_endpgm")

def kd(a, name, vgpr, sgpr=102, acc=None):
    a.L.append(".p2align 6")
    a.L.append(".amdhsa_kernel %s" % name)
    a.L.append("  .amdhsa_next_free_vgpr %d" % vgpr)
    a.L.append("  .amdhsa_next_free_sgpr %d" % sgpr)
    a.L.append("  .amdhsa_accum_offset %d" % (acc if acc else (vgpr + 3) // 4 * 4))
    a.L.append("  .amdhsa_group_segment_fixed_size 0")
    a.L.append("  .amdhsa_kernarg_size 104")
    a.L.append("  .amdhsa_user_sgpr_count 2")
    a.L.append("  .amdhsa_user_sgpr_kernarg_segment_ptr 1")
    a.L.append("  .amdhsa_system_sgpr_workgroup_id_x 1")
    a.L.append(".end_amdhsa_kernel")

def main():
    hdr = open("cdna_kernels/%s.s.ref" % NAME).read().split("; Override launch geometry")[0]
    a = A()
    a.L.append(hdr.rstrip("\n"))
    if "--stream" in sys.argv:
        a.L.append("; @launch kernel=stream_kernel grid=(256,1,1) block=(1024,1,1) lds=0")
    a.L.append("; @launch kernel=attn_kernel grid=(256,1,1) block=(768,1,1) lds=%d" % LDS1)
    if "--twice" in sys.argv:
        a.L.append("; @launch kernel=attn_kernel grid=(256,1,1) block=(768,1,1) lds=%d" % LDS1)
    a.L.append("; @launch kernel=oproj_kernel grid=(256,1,1) block=(256,1,1) lds=126976")
    if "--k2twice" in sys.argv:
        a.L.append("; @launch kernel=oproj_kernel grid=(256,1,1) block=(256,1,1) lds=126976")
    a.L.append('.amdgcn_target "amdgcn-amd-amdhsa--gfx950"')
    a.L.append(".text")
    for nm, g in (("wprep_kernel", gen_k0), ("attn_kernel", gen_k1), ("oproj_kernel", gen_k2), ("stream_kernel", gen_stream)):
        a.L.append(".globl %s" % nm)
        a.L.append(".p2align 8")
        a.L.append(".type %s,@function" % nm)
        g(a)
    a.L.append('.section .rodata,"a"')
    kd(a, "wprep_kernel", 48)
    kd(a, "stream_kernel", 72)
    kd(a, "attn_kernel", 168)
    kd(a, "oproj_kernel", 228 + 120, acc=228)
    args = [x for x in sys.argv[1:] if not x.startswith("--")]
    out = args[0] if args else "cdna_kernels/%s.s" % NAME
    open(out, "w").write(a.text())

main()
```

```python
import sys

NAME = "concat_heads__gqa_block_cached__mha_block_cached__near_ridge"

class A:
    def __init__(self):
        self.L = []
    def __call__(self, s):
        self.L.append("    " + s)
    def lab(self, s):
        self.L.append(s + ":")
    def c(self, s):
        self.L.append("    ; " + s)
    def text(self):
        return "\n".join(self.L) + "\n"

def vr(b, n=4):
    return "v[%d:%d]" % (b, b + n - 1)
def sr(b, n=4):
    return "s[%d:%d]" % (b, b + n - 1)

WS_OF = 0
OF_BYTES = 2 * 96 * 128 * 1024
WS_WF = OF_BYTES
WF_BYTES = 2 * 40 * 128 * 1024
WS_BYTES = 268435456

SZ_X = 8 * 192 * 640 * 2
SZ_KV = 8 * 32 * 512 * 128 * 2
SZ_W = 640 * 4096 * 2
SZ_OUT = 8 * 192 * 1280 * 2

def srd(a, d, base, size):
    a("s_mov_b32 s%d, s%d" % (d, base))
    a("s_and_b32 s%d, s%d, 0xffff" % (d + 1, base + 1))
    a("s_mov_b32 s%d, 0x%x" % (d + 2, size))
    a("s_mov_b32 s%d, 0x00020000" % (d + 3))

def gen_k0(a):
    a.lab("wprep_kernel")
    a("s_cmp_ge_u32 s2, 256")
    a("s_cbranch_scc1 L_k0_end")
    a("s_lshr_b32 s3, s2, 7")
    a("s_and_b32 s4, s2, 127")
    a("s_mul_i32 s5, s3, 40")
    a("s_add_u32 s6, s0, s5")
    a("s_addc_u32 s7, s1, 0")
    a("s_load_dwordx2 s[8:9], s[6:7], 32")
    a("s_load_dwordx2 s[10:11], s[0:1], 96")
    a("v_lshrrev_b32 v1, 6, v0")
    a("v_and_b32 v0, 63, v0")
    a("s_nop 0")
    a("v_readfirstlane_b32 s12, v1")
    a("s_waitcnt lgkmcnt(0)")
    srd(a, 16, 8, SZ_W)
    srd(a, 20, 10, WS_BYTES)
    a("v_lshrrev_b32 v1, 4, v0")
    a("v_and_b32 v2, 15, v0")
    a("v_mul_u32_u24 v1, 5120, v1")
    a("v_lshl_add_u32 v1, v2, 4, v1")
    a("s_mul_i32 s13, s4, 40960")
    a("s_lshl_b32 s14, s12, 8")
    a("s_add_u32 s13, s13, s14")
    a("s_mul_i32 s15, s12, 8704")
    for P in range(8):
        a("s_add_u32 s24, s13, %d" % ((16 * (P // 4) + P % 4) * 1280))
        a("s_add_u32 m0, s15, %d" % (P * 1088))
        a("s_nop 0")
        a("buffer_load_dwordx4 v1, s[16:19], s24 offen lds")
    a("v_lshrrev_b32 v3, 5, v0")
    a("v_bfe_u32 v4, v0, 4, 1")
    a("v_bfe_u32 v5, v0, 2, 2")
    a("v_and_b32 v6, 3, v0")
    a("v_lshl_add_u32 v3, v3, 2, v5")
    a("v_mul_u32_u24 v3, 1088, v3")
    a("v_lshl_add_u32 v3, v4, 8, v3")
    a("v_lshl_add_u32 v3, v6, 3, v3")
    a("v_add_u32 v3, s15, v3")
    a("s_mul_i32 s25, s3, 40")
    a("s_lshl_b32 s26, s12, 3")
    a("s_add_u32 s25, s25, s26")
    a("s_lshl_b32 s25, s25, 7")
    a("s_add_u32 s25, s25, s4")
    a("s_lshl_b32 s25, s25, 10")
    a("s_add_u32 s25, s25, 0x%x" % WS_WF)
    a("v_lshlrev_b32 v7, 4, v0")
    a("s_waitcnt vmcnt(0)")
    for nt in range(8):
        a("ds_read_b64_tr_b16 %s, v3 offset:%d" % (vr(8 + 4 * nt, 2), nt * 32))
        a("ds_read_b64_tr_b16 %s, v3 offset:%d" % (vr(10 + 4 * nt, 2), nt * 32 + 512))
    a("s_waitcnt lgkmcnt(0)")
    for nt in range(8):
        a("buffer_store_dwordx4 %s, v7, s[20:23], s25 offen" % vr(8 + 4 * nt))
        a("s_add_u32 s25, s25, 0x%x" % (128 * 1024))
    a.lab("L_k0_end")
    a("s_endpgm")

SLOT = 34816
QPB = 29696
QP0 = 2 * SLOT
NQB = 3
LDS1 = 160 * 1024
V_ACC = 0
V_Q = 64
V_S = 96
V_NM = 112
V_KV = 128
V_KA0, V_KA1, V_VA, V_DK, V_L, V_T0, V_T1, V_T2 = 160, 161, 162, 163, 164, 165, 166, 167
V_FS = [64, 104]
V_XA0, V_XA1, V_WA, V_DQ = 144, 145, 146, 147
S_BLK, S_B, S_HP, S_W, S_HSEL, S_QT = 3, 4, 5, 6, 7, 44
S_X, S_K, S_V, S_WQ, S_WS = 20, 24, 28, 32, 40
S_D1, S_D2 = 48, 52
S_G1, S_G1S, S_G1A, S_L1, S_L1S = 56, 57, 58, 59, 60
S_G2, S_G2S, S_L2 = 61, 62, 63
S_T0, S_T1, S_T2, S_T3 = 64, 65, 66, 67
S_ROLE = 68
S_SC = 70

STAMPS = "--stamps" in sys.argv
_stamp_n = [0]
def stamp(a):
    if not STAMPS:
        return
    n = _stamp_n[0]; _stamp_n[0] += 1
    a("%s s[%d:%d]" % ("s_memrealtime" if "--rt" in sys.argv else "s_memtime", 72 + 2 * n, 73 + 2 * n))

def stamp_dump(a, S_W=6, tag="k1"):
    if not STAMPS:
        return
    n = _stamp_n[0]
    _stamp_n[0] = 0
    a("s_waitcnt lgkmcnt(0)")
    a("s_cmp_lg_u32 s2, 0")
    a("s_cbranch_scc1 L_sd_e_%s" % tag)
    if tag == "k1":
        a("s_and_b32 s64, s%d, 3" % S_W)
        a("s_cmp_lg_u32 s64, 0")
        a("s_cbranch_scc1 L_sd_e_%s" % tag)
    a("s_load_dwordx2 s[10:11], s[0:1], 88")
    a("s_waitcnt lgkmcnt(0)")
    srd(a, 12, 10, 256)
    a("s_lshl_b32 s64, s%d, %d" % (S_W, 4 if tag == "k1" else 6))
    a("v_mov_b32 v1, 0")
    for i in range(n):
        a("s_sub_u32 s65, s%d, s72" % (72 + 2 * i))
        a("v_mov_b32 v2, s65")
        a("buffer_store_dword v2, v1, s[12:15], s64 offen offset:%d" % (4 * i))
    a.lab("L_sd_e_%s" % tag)

TOUCH_STRIDE = 128
NTOUCH = 8
for x in sys.argv:
    if x.startswith("--touch="):
        TOUCH_STRIDE = int(x.split("=")[1])
    if x.startswith("--ntouch="):
        NTOUCH = int(x.split("=")[1])
TPACE = 1
NPRE = 2
XWT2 = "--xwt2" in sys.argv
KVIT = -1
KVD = 0
for x in sys.argv:
    if x.startswith("--kvit="):
        KVIT = int(x.split("=")[1])
    if x.startswith("--kvd="):
        KVD = int(x.split("=")[1])
QRD = [3, 3, 2, 2, 2, 2, 2, 2]
for x in sys.argv:
    if x.startswith("--qrd="):
        QRD = [int(c) for c in x.split("=")[1]]
QPRIO = None
for x in sys.argv:
    if x.startswith("--qprio="):
        QPRIO = int(x.split("=")[1])
WQF = ""
XF = ""
for x in sys.argv:
    if x.startswith("--wqf="):
        WQF = " " + x.split("=")[1].replace("+", " ")
    if x.startswith("--xf="):
        XF = " " + x.split("=")[1].replace("+", " ")
OSF = ""
for x in sys.argv:
    if x.startswith("--osf="):
        OSF = " " + x.split("=")[1].replace("+", " ")
TPER = 1
for x in sys.argv:
    if x.startswith("--tper="):
        TPER = int(x.split("=")[1])
XWT = "--noxwt" not in sys.argv
WOF = ""
for x in sys.argv:
    if x.startswith("--wof="):
        WOF = " " + x.split("=")[1].replace("+", " ")
WO_IT = 3
TSTART = 9
TF = " nt"
for x in sys.argv:
    if x.startswith("--woit="):
        WO_IT = int(x.split("=")[1])
    if x.startswith("--tstart="):
        TSTART = int(x.split("=")[1])
    if x.startswith("--tf="):
        TF = " " + x.split("=")[1].replace("+", " ")
KVF = ""
for x in sys.argv:
    if x.startswith("--kvf="):
        KVF = " " + x.split("=")[1].replace("+", " ")
PRIO = None
for x in sys.argv:
    if x.startswith("--prio="):
        PRIO = [int(c) for c in x.split("=")[1]]
for x in sys.argv:
    if x.startswith("--tpace="):
        TPACE = int(x.split("=")[1])
    if x.startswith("--npre="):
        NPRE = int(x.split("=")[1])
V_DW, V_WR, V_WST, V_TCH, V_WD = 148, 149, 150, 151, 152
S_WO = 36
S_WG, S_WL, S_WSO = 47, 45, 46
WTAIL = 4 * SLOT

def gen_k1(a):
    a.lab("attn_kernel")
    a("s_cmp_ge_u32 s2, 256")
    a("s_cbranch_scc1 L_k1_end")
    stamp(a)
    if "--wgt" in sys.argv:
        a("s_memrealtime s[100:101]")
    a("s_bfe_u32 s%d, s2, 0x10002" % S_BLK)
    a("s_lshr_b32 s%d, s2, 5" % S_B)
    a("s_and_b32 s%d, s2, 3" % S_HP)
    a("s_lshl_b32 s%d, s%d, 2" % (S_HP, S_HP))
    a("s_bfe_u32 s%d, s2, 0x20003" % S_T0)
    a("s_add_u32 s%d, s%d, s%d" % (S_HP, S_HP, S_T0))
    a("s_mul_i32 s%d, s%d, 40" % (S_T0, S_BLK))
    a("s_add_u32 s8, s0, s%d" % S_T0)
    a("s_addc_u32 s9, s1, 0")
    a("s_load_dwordx8 s[12:19], s[8:9], 0")
    a("s_load_dwordx2 s[10:11], s[0:1], 96")
    a("s_lshr_b32 s%d, s2, 7" % S_T1)
    a("s_mul_i32 s%d, s%d, 40" % (S_T0, S_T1))
    a("s_add_u32 s8, s0, s%d" % S_T0)
    a("s_addc_u32 s9, s1, 0")
    a("s_load_dwordx2 s[46:47], s[8:9], 32")
    a("v_lshrrev_b32 v1, 6, v0")
    a("v_and_b32 v0, 63, v0")
    a("s_nop 0")
    a("v_readfirstlane_b32 s%d, v1" % S_W)
    a("s_nop 3")
    a("s_cmp_ge_u32 s%d, 6" % S_W)
    a("s_cselect_b32 s%d, 1, 0" % S_HSEL)
    a("s_mul_i32 s%d, s%d, 6" % (S_T0, S_HSEL))
    a("s_sub_u32 s%d, s%d, s%d" % (S_QT, S_W, S_T0))
    a("s_lshr_b32 s%d, s%d, 2" % (S_ROLE, S_W))
    a("s_mov_b32 s%d, 0x3e0293ee" % S_SC)
    a("s_mov_b32 s%d, 0x3e0293ee" % (S_SC + 1))
    a("s_waitcnt lgkmcnt(0)")
    srd(a, S_X, 12, SZ_X)
    srd(a, S_K, 14, SZ_KV)
    srd(a, S_V, 16, SZ_KV)
    srd(a, S_WQ, 18, SZ_W)
    srd(a, S_WS, 10, WS_BYTES)
    srd(a, S_WO, 46, SZ_W)
    a("v_and_b32 v1, 31, v0")
    a("v_lshrrev_b32 v2, 5, v0")
    a("v_bfe_u32 v3, v0, 4, 1")
    a("v_bfe_u32 v4, v0, 2, 2")
    a("v_and_b32 v5, 3, v0")
    a("s_cmp_eq_u32 s%d, 0" % S_ROLE)
    for i in range(3):
        a("s_cselect_b32 s%d, s%d, s%d" % (S_D1 + i, S_X + i, S_WQ + i))
    a("s_mov_b32 s%d, 0x00020000" % (S_D1 + 3))
    a("s_mov_b32 s%d, 8192" % S_T0)
    a("s_cselect_b32 s%d, 20480, s%d" % (S_G1S, S_T0))
    a("s_cselect_b32 s%d, 64, 262144" % S_G1A)
    a("s_mov_b32 s%d, 1088" % S_T0)
    a("s_cselect_b32 s%d, 1024, s%d" % (S_L1S, S_T0))
    a("s_mul_i32 s%d, s%d, 192" % (S_T0, S_B))
    a("s_mul_i32 s%d, s%d, 48" % (S_T1, S_W))
    a("s_add_u32 s%d, s%d, s%d" % (S_T0, S_T0, S_T1))
    a("s_mul_i32 s%d, s%d, 1280" % (S_T0, S_T0))
    a("s_mul_i32 s%d, s%d, 3072" % (S_T1, S_W))
    a("s_add_u32 s%d, s%d, %d" % (S_T1, S_T1, QP0))
    a("s_sub_u32 s%d, s%d, 4" % (S_T2, S_W))
    a("s_lshl_b32 s%d, s%d, 16" % (S_T3, S_T2))
    a("s_lshl_b32 s98, s%d, 9" % S_HP)
    a("s_add_u32 s%d, s%d, s98" % (S_T3, S_T3))
    a("s_mul_i32 s%d, s%d, 4352" % (S_T2, S_T2))
    a("s_add_u32 s%d, s%d, %d" % (S_T2, S_T2, QP0 + 12288))
    a("s_cmp_eq_u32 s%d, 0" % S_ROLE)
    a("s_cselect_b32 s%d, s%d, s%d" % (S_G1, S_T0, S_T3))
    a("s_cselect_b32 s%d, s%d, s%d" % (S_L1, S_T1, S_T2))
    a("v_lshrrev_b32 v6, 2, v0")
    a("v_bfe_u32 v7, v0, 4, 2")
    a("v_xor_b32 v7, v5, v7")
    a("v_mul_u32_u24 v6, 1280, v6")
    a("v_lshl_add_u32 v6, v7, 4, v6")
    a("v_lshlrev_b32 v7, 15, v2")
    a("v_lshl_add_u32 v7, v1, 4, v7")
    a("s_cselect_b64 vcc, -1, 0")
    a("v_cndmask_b32 v%d, v7, v6, vcc" % V_DQ)
    a("s_sub_u32 s%d, s%d, 8" % (S_T0, S_W))
    a("s_and_b32 s%d, s%d, 1" % (S_T1, S_T0))
    a("s_lshl_b32 s%d, s%d, 5" % (S_T2, S_B))
    a("s_lshl_b32 s%d, s%d, 1" % (S_T3, S_HP))
    a("s_add_u32 s%d, s%d, s%d" % (S_T2, S_T2, S_T3))
    a("s_add_u32 s%d, s%d, s%d" % (S_T2, S_T2, S_T1))
    a("s_lshl_b32 s%d, s%d, 17" % (S_G2, S_T2))
    a("s_mul_i32 s%d, s%d, 8704" % (S_L2, S_T0))
    a("s_and_b32 s%d, s2, 127" % S_T1)
    a("s_mul_i32 s%d, s%d, 40960" % (S_WG, S_T1))
    a("s_lshl_b32 s%d, s%d, 8" % (S_T2, S_T0))
    a("s_add_u32 s%d, s%d, s%d" % (S_WG, S_WG, S_T2))
    a("s_lshr_b32 s%d, s2, 7" % S_T2)
    a("s_lshl_b32 s%d, s%d, 10" % (S_T2, S_T2))
    a("s_add_u32 s%d, s%d, s%d" % (S_T2, S_T2, S_T1))
    a("s_mul_i32 s%d, s%d, 5120" % (S_T2, S_T2))
    a("s_add_u32 s%d, s%d, 0x%x" % (S_WSO, S_T2, WS_WF))
    a("s_lshl_b32 s%d, s%d, 3" % (S_WL, S_T0))
    a("s_cmp_lt_u32 s%d, 10" % S_W)
    for i in range(3):
        a("s_cselect_b32 s%d, s%d, s%d" % (S_D2 + i, S_K + i, S_V + i))
    a("s_mov_b32 s%d, 0x00020000" % (S_D2 + 3))
    a("v_lshrrev_b32 v6, 4, v0")
    a("v_and_b32 v7, 15, v0")
    a("v_xor_b32 v8, v7, v6")
    a("v_lshlrev_b32 v8, 4, v8")
    a("v_lshl_add_u32 v8, v6, 8, v8")
    a("v_lshlrev_b32 v7, 4, v7")
    a("v_mul_u32_u24 v9, 5120, v6")
    a("v_add_u32 v%d, v9, v7" % V_DW)
    a("v_lshl_add_u32 v7, v6, 10, v7")
    a("s_cselect_b64 vcc, -1, 0")
    a("v_cndmask_b32 v%d, v7, v8, vcc" % V_DK)
    a("v_mul_u32_u24 v%d, %d, v0" % (V_TCH, TOUCH_STRIDE))

    r2 = []
    def r2_wait_n(tag):
        idx = max(i for i, t in enumerate(r2) if t == tag)
        return len(r2) - 1 - idx

    def qp_dma(stage):
        buf = stage % NQB
        lab = "L_qd_%d" % stage
        a("s_cmp_ge_u32 s%d, 2" % S_ROLE)
        a("s_cbranch_scc1 %s_e" % lab)
        a("s_mov_b32 s%d, s%d" % (S_T0, S_G1))
        a("s_add_u32 s%d, s%d, %d" % (S_T1, S_L1, buf * QPB))
        a("s_cmp_eq_u32 s%d, 0" % S_ROLE)
        a("s_cbranch_scc0 %s_w" % lab)
        for k in range(3):
            a("s_mov_b32 m0, s%d" % S_T1)
            a("s_nop 0")
            a("buffer_load_dwordx4 v%d, %s, s%d offen%s lds" % (V_DQ, sr(S_D1), S_T0, XF))
            if k < 2:
                a("s_add_u32 s%d, s%d, s%d" % (S_T0, S_T0, S_G1S))
                a("s_add_u32 s%d, s%d, s%d" % (S_T1, S_T1, S_L1S))
        a("s_branch %s_x" % lab)
        a.lab(lab + "_w")
        for k in range(4):
            a("s_mov_b32 m0, s%d" % S_T1)
            a("s_nop 0")
            a("buffer_load_dwordx4 v%d, %s, s%d offen%s lds" % (V_DQ, sr(S_D1), S_T0, WQF))
            if k < 3:
                a("s_add_u32 s%d, s%d, s%d" % (S_T0, S_T0, S_G1S))
                a("s_add_u32 s%d, s%d, s%d" % (S_T1, S_T1, S_L1S))
        a.lab(lab + "_x")
        a("s_add_u32 s%d, s%d, s%d" % (S_G1, S_G1, S_G1A))
        a.lab(lab + "_e")

    def r2_begin(tag):
        a("s_cmp_lt_u32 s%d, 2" % S_ROLE)
        a("s_cbranch_scc1 L_r2_%s" % tag)
    def r2_end(tag):
        a.lab("L_r2_%s" % tag)

    def kv_dma(stage, tag):
        slot = stage % 4
        lab = "L_kd_%s" % tag
        r2_begin(lab)
        a("s_cmp_lt_u32 s%d, 10" % S_W)
        a("s_cbranch_scc0 %s_v" % lab)
        for P in range(8):
            a("s_add_u32 s%d, s%d, %d" % (S_T0, S_G2, stage * 8192 + P * 1024))
            a("s_add_u32 m0, s%d, %d" % (S_L2, slot * SLOT + P * 1088))
            a("s_nop 0")
            a("buffer_load_dwordx4 v%d, %s, s%d offen%s lds" % (V_DK, sr(S_D2), S_T0, KVF))
        a("s_branch L_r2_%s" % lab)
        a.lab(lab + "_v")
        for P in range(8):
            a("s_add_u32 s%d, s%d, %d" % (S_T0, S_G2, stage * 8192 + (16 * (P // 4) + P % 4) * 256))
            a("s_add_u32 m0, s%d, %d" % (S_L2, slot * SLOT + P * 1088))
            a("s_nop 0")
            a("buffer_load_dwordx4 v%d, %s, s%d offen%s lds" % (V_DK, sr(S_D2), S_T0, KVF))
        r2_end(lab)
        r2.extend(["kv%d" % stage] * 8)

    def touch(stage, tag):
        n = 8192 // (64 * TOUCH_STRIDE)
        r2_begin("t" + tag)
        for k in range(n):
            a("s_add_u32 s%d, s%d, %d" % (S_T0, S_G2, stage * 8192 + k * 64 * TOUCH_STRIDE))
            a("buffer_load_dword v%d, v%d, %s, s%d offen%s" % (V_T0, V_TCH, sr(S_D2), S_T0, TF))
            r2.append("touch")
        r2_end("t" + tag)

    def wo_dma(tile4):
        for P in range(8):
            if tile4:
                a("s_add_u32 s%d, s%d, %d" % (S_T0, S_WG, 1024 + (16 * (P // 4) + P % 4) * 1280))
                a("s_mov_b32 m0, %d" % (WTAIL + P * 1088))
            else:
                a("s_add_u32 s%d, s%d, %d" % (S_T0, S_WG, (16 * (P // 4) + P % 4) * 1280))
                a("s_add_u32 m0, s%d, %d" % (S_L2, P * 1088))
            a("s_nop 0")
            a("buffer_load_dwordx4 v%d, %s, s%d offen%s lds" % (V_T0, sr(S_WO), S_T0, WOF))

    def wo_batch(bi, tile4):
        for q in range(2):
            nt = 2 * bi + q
            base = WTAIL if tile4 else 0
            a("ds_read_b64_tr_b16 %s, v%d offset:%d" % (vr(V_WD + 4 * q, 2), V_WR + (1 if tile4 else 0) * 0, nt * 32))
            a("ds_read_b64_tr_b16 %s, v%d offset:%d" % (vr(V_WD + 4 * q + 2, 2), V_WR, nt * 32 + 512))
        a("s_waitcnt lgkmcnt(0)")
        for q in range(2):
            nt = 2 * bi + q
            a("s_add_u32 s%d, s%d, %d" % (S_T0, S_WSO, (nt + (32 if tile4 else 0)) * 131072))
            a("buffer_store_dwordx4 %s, v%d, %s, s%d offen" % (vr(V_WD + 4 * q), V_WST, sr(S_WS), S_T0))

    def role_wait(tag, n0, n1, n2):
        lab = "L_rw_%s" % tag
        vals = [n0, n1, n2]
        for r in range(3):
            if vals[r] is None:
                continue
            a("s_cmp_lg_u32 s%d, %d" % (S_ROLE, r))
            a("s_cbranch_scc1 %s_%d" % (lab, r))
            a("s_waitcnt vmcnt(%d)" % vals[r])
            a.lab("%s_%d" % (lab, r))

    for st in range(3):
        qp_dma(st)
    a("s_barrier")
    if XWT:
        r2_begin("xwt")
        if XWT2:
            a("s_cmp_eq_u32 s%d, 8" % S_W)
            a("s_cbranch_scc0 L_xwt_n8")
            a("s_lshl_b32 s%d, s%d, 17" % (S_T0, S_B))
            a("s_lshl_b32 s%d, s%d, 9" % (S_T1, S_HP))
            a("s_add_u32 s%d, s%d, s%d" % (S_T0, S_T0, S_T1))
            a("v_lshrrev_b32 v6, 2, v0")
            a("v_lshlrev_b32 v6, 13, v6")
            a("v_lshl_add_u32 v6, v5, 7, v6")
            for k in range(5):
                a("buffer_load_dword v%d, v6, %s, s%d offen%s" % (V_T0, sr(S_WQ), S_T0, WQF))
                a("s_add_u32 s%d, s%d, %d" % (S_T0, S_T0, 128 * 8192))
            a("s_branch L_r2_xwt")
            a.lab("L_xwt_n8")
            a("s_cmp_eq_u32 s%d, 9" % S_W)
            a("s_cbranch_scc0 L_r2_xwt")
            a("s_bfe_u32 s%d, s2, 0x20003" % S_T0)
            a("s_mul_i32 s%d, s%d, 48" % (S_T0, S_T0))
            a("s_mul_i32 s%d, s%d, 192" % (S_T1, S_B))
            a("s_add_u32 s%d, s%d, s%d" % (S_T0, S_T0, S_T1))
            a("s_mul_i32 s%d, s%d, 1280" % (S_T0, S_T0))
            a("v_min_u32 v6, 47, v0")
            a("v_mul_u32_u24 v6, 1280, v6")
            for i in range(10):
                a("buffer_load_dword v%d, v6, %s, s%d offen offset:%d" % (V_T0, sr(S_X), S_T0, i * 128))
        else:
            a("s_sub_u32 s%d, s%d, 8" % (S_T3, S_W))
            a("s_bfe_u32 s%d, s2, 0x20003" % S_T0)
            a("s_mul_i32 s%d, s%d, 48" % (S_T0, S_T0))
            a("s_mul_i32 s%d, s%d, 192" % (S_T1, S_B))
            a("s_add_u32 s%d, s%d, s%d" % (S_T0, S_T0, S_T1))
            a("s_mul_i32 s%d, s%d, 1280" % (S_T0, S_T0))
            a("s_lshl_b32 s%d, s%d, 7" % (S_T1, S_T3))
            a("s_add_u32 s%d, s%d, s%d" % (S_T0, S_T0, S_T1))
            a("v_min_u32 v6, 47, v0")
            a("v_mul_u32_u24 v6, 1280, v6")
            a("buffer_load_dword v%d, v6, %s, s%d offen" % (V_T0, sr(S_X), S_T0))
            a("buffer_load_dword v%d, v6, %s, s%d offen offset:512" % (V_T0, sr(S_X), S_T0))
            a("s_cmp_ge_u32 s%d, 2" % S_T3)
            a("s_cbranch_scc1 L_xwt_skip")
            a("buffer_load_dword v%d, v6, %s, s%d offen offset:1024" % (V_T0, sr(S_X), S_T0))
            a.lab("L_xwt_skip")
            a("s_mul_i32 s%d, s%d, 80" % (S_T0, S_B))
            a("s_lshl_b32 s%d, s%d, 4" % (S_T1, S_T3))
            a("s_add_u32 s%d, s%d, s%d" % (S_T0, S_T0, S_T1))
            a("s_lshl_b32 s%d, s%d, 13" % (S_T0, S_T0))
            a("s_lshl_b32 s%d, s%d, 9" % (S_T1, S_HP))
            a("s_add_u32 s%d, s%d, s%d" % (S_T0, S_T0, S_T1))
            a("v_lshrrev_b32 v6, 2, v0")
            a("v_lshlrev_b32 v6, 13, v6")
            a("v_lshl_add_u32 v6, v5, 7, v6")
            a("buffer_load_dword v%d, v6, %s, s%d offen%s" % (V_T0, sr(S_WQ), S_T0, WQF))
            a("s_cmp_lg_u32 s%d, 0" % S_T3)
            a("s_cbranch_scc1 L_xwt_skip2")
            a("s_add_u32 s%d, s%d, %d" % (S_T0, S_T0, 64 * 8192))
            a("buffer_load_dword v%d, v6, %s, s%d offen%s" % (V_T0, sr(S_WQ), S_T0, WQF))
            a.lab("L_xwt_skip2")
        r2_end("xwt")
    if KVIT < 0:
        kv_dma(0, "p0")
        kv_dma(1, "p1")
    tq = list(range(2, 2 + NTOUCH))
    a("s_lshl_b32 s%d, s%d, 5" % (S_T0, S_QT))
    a("v_add_u32 v6, s%d, v1" % S_T0)
    a("v_bfe_u32 v7, v6, 2, 2")
    a("v_xor_b32 v8, v2, v7")
    a("v_lshlrev_b32 v6, 6, v6")
    a("v_lshl_add_u32 v%d, v8, 4, v6" % V_XA0)
    a("v_xor_b32 v8, 2, v8")
    a("v_lshl_add_u32 v%d, v8, 4, v6" % V_XA1)
    a("v_add_u32 v%d, %d, v%d" % (V_XA0, QP0, V_XA0))
    a("v_add_u32 v%d, %d, v%d" % (V_XA1, QP0, V_XA1))
    a("v_lshl_add_u32 v6, v2, 2, v4")
    a("v_mul_u32_u24 v6, 1088, v6")
    a("v_lshl_add_u32 v6, v3, 5, v6")
    a("v_and_b32 v7, 1, v5")
    a("v_lshl_add_u32 v6, v7, 4, v6")
    a("v_lshrrev_b32 v7, 1, v5")
    a("v_lshl_add_u32 v6, v7, 3, v6")
    a("s_lshl_b32 s%d, s%d, 8" % (S_T0, S_HSEL))
    a("s_add_u32 s%d, s%d, %d" % (S_T0, S_T0, QP0 + 12288))
    a("v_add_u32 v%d, s%d, v6" % (V_WA, S_T0))
    a("v_lshrrev_b32 v6, 2, v1")
    a("v_mul_u32_u24 v6, 1088, v6")
    a("v_and_b32 v7, 3, v1")
    a("v_lshl_add_u32 v6, v7, 8, v6")
    a("v_xor_b32 v8, v2, v7")
    a("s_mul_i32 s%d, s%d, 8704" % (S_T0, S_HSEL))
    a("v_add_u32 v6, s%d, v6" % S_T0)
    a("v_lshl_add_u32 v%d, v8, 4, v6" % V_KA0)
    a("v_xor_b32 v8, 2, v8")
    a("v_lshl_add_u32 v%d, v8, 4, v6" % V_KA1)
    a("v_mul_u32_u24 v6, 1088, v4")
    a("v_lshl_add_u32 v6, v2, 8, v6")
    a("v_lshl_add_u32 v6, v3, 5, v6")
    a("v_lshl_add_u32 v6, v5, 3, v6")
    a("s_add_u32 s%d, s%d, 17408" % (S_T0, S_T0))
    a("v_add_u32 v%d, s%d, v6" % (V_VA, S_T0))
    a("v_lshl_add_u32 v6, v2, 2, v4")
    a("v_mul_u32_u24 v6, 1088, v6")
    a("v_lshl_add_u32 v6, v3, 8, v6")
    a("v_lshl_add_u32 v6, v5, 3, v6")
    a("v_add_u32 v%d, s%d, v6" % (V_WR, S_L2))
    a("v_lshlrev_b32 v%d, 4, v0" % V_WST)
    a("v_mov_b32 v%d, v0" % V_T2)

    def qp_reads(stage, fs):
        base = V_FS[fs]
        L = []
        for ks in range(2):
            L.append("ds_read_b128 %s, v%d" % (vr(base + 4 * ks), V_XA0 + ks))
            for t in range(4):
                d = base + 8 + (ks * 4 + t) * 4
                for u in range(2):
                    L.append("ds_read_b64_tr_b16 %s, v%d offset:%d" % (vr(d + 2 * u, 2), V_WA, ks * 8704 + u * 512 + t * 64))
        return L

    def qp_addr_adv(stage_from):
        d = QPB if (stage_from % NQB) != NQB - 1 else -(NQB - 1) * QPB
        for r in (V_XA0, V_XA1, V_WA):
            if d > 0:
                a("v_add_u32 v%d, %d, v%d" % (r, d, r))
            else:
                a("v_subrev_u32 v%d, %d, v%d" % (r, -d, r))

    role_wait("pre", 6, 8, None)
    a("s_barrier")
    stamp(a)
    for ins in qp_reads(0, 0):
        a(ins)
    qp_addr_adv(0)
    NQ = 20
    for j in range(NQ):
        a.c("---- qproj iter %d" % j)
        if j in (5, 10, 15):
            stamp(a)
        if j + 1 <= NQ - 1:
            rem = 1 if j + 2 <= NQ - 1 else 0
            role_wait("q%d" % j, 3 * rem, 4 * rem, None)
        a("s_waitcnt lgkmcnt(0)")
        a("s_barrier")
        if j + 3 < NQ:
            qp_dma(j + 3)
        if tq and j >= TSTART and (j - TSTART) % TPACE == 0:
            for _i in range(TPER):
                if tq: touch(tq.pop(0), "q%d_%d" % (j, _i))
        if j == KVIT:
            kv_dma(0, "p0")
        if j == KVIT + KVD:
            kv_dma(1, "p1")
        if j == 19:
            kv_dma(2, "q19a")
            kv_dma(3, "q19b")
        if QPRIO is not None: a("s_setprio %d" % QPRIO)
        a("s_waitcnt lgkmcnt(0)")
        fs = j & 1
        base = V_FS[fs]
        rd = qp_reads(j + 1, fs ^ 1) if j + 1 < NQ else []
        mf = []
        for ks in range(2):
            for t in range(4):
                c = "0" if (j == 0 and ks == 0) else vr(V_ACC + 16 * t, 16)
                mf.append("v_mfma_f32_32x32x16_bf16 %s, %s, %s, %s" % (
                    vr(V_ACC + 16 * t, 16), vr(base + 8 + (ks * 4 + t) * 4), vr(base + 4 * ks), c))
        ri = 0
        for m in range(8):
            a(mf[m])
            n = QRD[m]
            for _ in range(n):
                if ri < len(rd):
                    a(rd[ri]); ri += 1
        while ri < len(rd):
            a(rd[ri]); ri += 1
        if j + 1 < NQ:
            qp_addr_adv(j + 1)
        if QPRIO is not None: a("s_setprio 0")
    a.c("---- q convert")
    stamp(a)
    role_wait("a_pre2", None, None, r2_wait_n("kv0"))
    a("s_nop 15")
    for t in range(4):
        for p in range(8):
            i0 = V_ACC + 16 * t + 2 * p
            a("v_pk_mul_f32 %s, %s, %s" % (vr(i0, 2), vr(i0, 2), sr(S_SC, 2)))
            a("v_cvt_pk_bf16_f32 v%d, v%d, v%d" % (V_Q + t * 8 + p, i0, i0 + 1))
    a("v_mov_b32 v%d, 0" % V_L)

    def k_reads(stage):
        L = []
        for s in range(8):
            L.append("ds_read_b128 %s, v%d offset:%d" % (vr(V_KV + 4 * s), V_KA0 + (s & 1), (s >> 1) * 64))
        return L
    def v_reads():
        L = []
        for sl in range(2):
            for dt in range(4):
                f = sl * 4 + dt
                for u in range(2):
                    L.append("ds_read_b64_tr_b16 %s, v%d offset:%d" % (vr(V_KV + 4 * f + 2 * u, 2), V_VA, sl * 4352 + u * 512 + dt * 64))
        return L
    def slot_adv(regs, stage_from):
        d = SLOT if (stage_from % 4) != 3 else -3 * SLOT
        for r in regs:
            if d > 0:
                a("v_add_u32 v%d, %d, v%d" % (r, d, r))
            else:
                a("v_subrev_u32 v%d, %d, v%d" % (r, -d, r))

    a("s_barrier")
    for ins in k_reads(0):
        a(ins)
    slot_adv((V_KA0, V_KA1), 0)
    NT = 16
    rare = []
    for t in range(NT):
        a.c("---- attn stage %d" % t)
        if t in (0, 1, 4, 8, 12):
            stamp(a)
        if t + 1 < NT:
            role_wait("a%d" % t, None, None, r2_wait_n("kv%d" % (t + 1)))
        a("s_barrier")
        if t >= 1 and t + 3 < NT:
            kv_dma(t + 3, "a%d" % t)
        if t == 13:
            a("v_lshrrev_b32 v%d, 4, v%d" % (V_T0, V_T2))
            a("v_and_b32 v%d, 15, v%d" % (V_T1, V_T2))
            a("v_mul_u32_u24 v%d, 5120, v%d" % (V_T0, V_T0))
            a("v_lshl_add_u32 v%d, v%d, 4, v%d" % (V_T0, V_T1, V_T0))
            r2_begin("wo")
            a("s_cmp_lg_u32 s%d, 8" % S_W)
            a("s_cbranch_scc1 L_wo4_skip")
            wo_dma(True)
            a.lab("L_wo4_skip")
            wo_dma(False)
            r2_end("wo")
            r2.extend(["wo"] * 8)
        if PRIO: a("s_setprio %d" % PRIO[0])
        a("s_waitcnt lgkmcnt(0)")
        vrd = v_reads()
        S = V_S
        for s in range(8):
            c = ("0" if t == 0 else vr(V_NM, 16)) if s == 0 else vr(S, 16)
            a("v_mfma_f32_32x32x16_bf16 %s, %s, %s, %s" % (vr(S, 16), vr(V_KV + 4 * s), vr(V_Q + 4 * s), c))
            if s >= 1:
                a(vrd[2 * (s - 1)]); a(vrd[2 * (s - 1) + 1])
        a(vrd[14]); a(vrd[15])
        slot_adv((V_VA,), t)
        if PRIO: a("s_setprio %d" % PRIO[1])
        a("s_nop 7")
        a("s_nop 1")
        T0, T1 = V_T0, V_T1
        a("v_max3_f32 v%d, v%d, v%d, v%d" % (T0, S, S + 1, S + 2))
        a("v_max3_f32 v%d, v%d, v%d, v%d" % (T1, S + 3, S + 4, S + 5))
        a("v_max3_f32 v%d, v%d, v%d, v%d" % (T0, T0, S + 6, S + 7))
        a("v_max3_f32 v%d, v%d, v%d, v%d" % (T1, T1, S + 8, S + 9))
        a("v_max3_f32 v%d, v%d, v%d, v%d" % (T0, T0, S + 10, S + 11))
        a("v_max3_f32 v%d, v%d, v%d, v%d" % (T1, T1, S + 12, S + 13))
        a("v_max3_f32 v%d, v%d, v%d, v%d" % (T0, T0, S + 14, S + 15))
        a("v_max_f32 v%d, v%d, v%d" % (T0, T0, T1))
        if t == 0:
            a("v_mov_b32 v%d, v%d" % (T1, T0))
            a("s_nop 1")
            a("v_permlane32_swap_b32 v%d, v%d" % (T0, T1))
            a("s_nop 1")
            a("v_max_f32 v%d, v%d, v%d" % (T0, T0, T1))
            for i in range(16):
                a("v_sub_f32 v%d, v%d, v%d" % (S + i, S + i, T0))
            for i in range(16):
                a("v_sub_f32 v%d, 0, v%d" % (V_NM + i, T0))
        else:
            a("v_cmp_lt_f32 vcc, 0x41000000, v%d" % T0)
            a("s_cbranch_vccnz L_rare_%d" % t)
            a.lab("L_back_%d" % t)
            R = []
            R.append("L_rare_%d:" % t)
            R.append("    v_mov_b32 v%d, v%d" % (T1, T0))
            R.append("    s_nop 1")
            R.append("    v_permlane32_swap_b32 v%d, v%d" % (T0, T1))
            R.append("    s_nop 1")
            R.append("    v_max_f32 v%d, v%d, v%d" % (T0, T0, T1))
            R.append("    v_max_f32 v%d, 0, v%d" % (T0, T0))
            R.append("    v_exp_f32 v%d, -v%d" % (T1, T0))
            for i in range(16):
                R.append("    v_sub_f32 v%d, v%d, v%d" % (S + i, S + i, T0))
            for i in range(16):
                R.append("    v_sub_f32 v%d, v%d, v%d" % (V_NM + i, V_NM + i, T0))
            for i in range(64):
                R.append("    v_mul_f32 v%d, v%d, v%d" % (V_ACC + i, V_ACC + i, T1))
            R.append("    v_mul_f32 v%d, v%d, v%d" % (V_L, V_L, T1))
            R.append("    s_nop 1")
            R.append("    s_branch L_back_%d" % t)
            rare += R
        for i in range(16):
            a("v_exp_f32 v%d, v%d" % (S + i, S + i))
        for i in range(16):
            a("v_add_f32 v%d, v%d, v%d" % (V_L, V_L, S + i))
        for p in range(4):
            a("v_cvt_pk_bf16_f32 v%d, v%d, v%d" % (S + p, S + 2 * p, S + 2 * p + 1))
        for p in range(4):
            a("v_cvt_pk_bf16_f32 v%d, v%d, v%d" % (S + 8 + p, S + 8 + 2 * p, S + 8 + 2 * p + 1))
        if PRIO: a("s_setprio %d" % PRIO[2])
        a("s_waitcnt lgkmcnt(0)")
        krd = k_reads(t + 1) if t + 1 < NT else []
        for f in range(8):
            sl, dt = f // 4, f % 4
            c = "0" if (t == 0 and sl == 0) else vr(V_ACC + 16 * dt, 16)
            a("v_mfma_f32_32x32x16_bf16 %s, %s, %s, %s" % (vr(V_ACC + 16 * dt, 16), vr(V_KV + 4 * f), vr(S + 8 * sl), c))
            if f >= 1 and krd:
                a(krd[f - 1])
        if krd:
            a(krd[7])
            slot_adv((V_KA0, V_KA1), t + 1)
    a.c("---- epilogue")
    stamp(a)
    T0, T1 = V_T0, V_T1
    a("v_mov_b32 v%d, v%d" % (T1, V_L))
    a("s_nop 1")
    a("v_permlane32_swap_b32 v%d, v%d" % (V_L, T1))
    a("s_nop 1")
    a("v_add_f32 v%d, v%d, v%d" % (V_L, V_L, T1))
    a("v_rcp_f32 v%d, v%d" % (V_L, V_L))
    a("s_lshl_b32 s%d, s%d, 4" % (S_T0, S_BLK))
    a("s_lshl_b32 s%d, s%d, 1" % (S_T1, S_B))
    a("s_add_u32 s%d, s%d, s%d" % (S_T0, S_T0, S_T1))
    a("s_cmp_ge_u32 s%d, 3" % S_QT)
    a("s_cselect_b32 s%d, 1, 0" % S_T1)
    a("s_add_u32 s%d, s%d, s%d" % (S_T0, S_T0, S_T1))
    a("s_mul_i32 s%d, s%d, 3" % (S_T1, S_T1))
    a("s_sub_u32 s%d, s%d, s%d" % (S_T2, S_QT, S_T1))
    a("s_lshl_b32 s%d, s%d, 7" % (S_T0, S_T0))
    a("s_lshl_b32 s%d, s%d, 1" % (S_T1, S_HP))
    a("s_add_u32 s%d, s%d, s%d" % (S_T1, S_T1, S_HSEL))
    a("s_lshl_b32 s%d, s%d, 2" % (S_T1, S_T1))
    a("s_add_u32 s%d, s%d, s%d" % (S_T0, S_T0, S_T1))
    a("s_mul_i32 s%d, s%d, 6144" % (S_T0, S_T0))
    a("s_lshl_b32 s%d, s%d, 11" % (S_T2, S_T2))
    a("s_add_u32 s%d, s%d, s%d" % (S_T0, S_T0, S_T2))
    ln = V_T2
    a("v_and_b32 v%d, 15, v%d" % (T0, ln))
    a("v_bfe_u32 v%d, v%d, 4, 1" % (T1, ln))
    a("v_lshlrev_b32 v%d, 10, v%d" % (T1, T1))
    a("v_lshl_add_u32 v%d, v%d, 4, v%d" % (T0, T0, T1))
    a("v_lshrrev_b32 v%d, 5, v%d" % (T1, ln))
    a("v_lshl_add_u32 v%d, v%d, 8, v%d" % (T0, T1, T0))
    a("s_nop 7")
    for dt in range(4):
        for half in range(2):
            b0 = V_ACC + 16 * dt + 8 * half
            d = V_Q + (dt * 2 + half) * 4
            for p in range(4):
                a("v_mul_f32 v%d, v%d, v%d" % (b0 + 2 * p, b0 + 2 * p, V_L))
                a("v_mul_f32 v%d, v%d, v%d" % (b0 + 2 * p + 1, b0 + 2 * p + 1, V_L))
                a("v_cvt_pk_bf16_f32 v%d, v%d, v%d" % (d + p, b0 + 2 * p, b0 + 2 * p + 1))
            if "--noostore" not in sys.argv:
                a("buffer_store_dwordx4 %s, v%d, %s, s%d offen offset:%d%s" % (vr(d), T0, sr(S_WS), S_T0, half * 512, OSF))
        a("s_add_u32 s%d, s%d, 6144" % (S_T0, S_T0))
    r2_begin("wofin")
    ln = V_T2
    a("v_lshrrev_b32 v1, 5, v%d" % ln)
    a("v_bfe_u32 v2, v%d, 4, 1" % ln)
    a("v_bfe_u32 v3, v%d, 2, 2" % ln)
    a("v_and_b32 v4, 3, v%d" % ln)
    a("v_lshl_add_u32 v1, v1, 2, v3")
    a("v_mul_u32_u24 v1, 1088, v1")
    a("v_lshl_add_u32 v1, v2, 8, v1")
    a("v_lshl_add_u32 v1, v4, 3, v1")
    a("v_add_u32 v2, s%d, v1" % S_L2)
    a("v_add_u32 v3, %d, v1" % WTAIL)
    a("v_lshlrev_b32 v4, 4, v%d" % ln)
    a("s_waitcnt vmcnt(%d)" % (0 if "--noostore" in sys.argv else 8))
    for tile4 in (False, True):
        if tile4:
            a("s_cmp_lg_u32 s%d, 8" % S_W)
            a("s_cbranch_scc1 L_r2_wofin")
        for nt in range(8):
            a("ds_read_b64_tr_b16 %s, v%d offset:%d" % (vr(8 + 4 * nt, 2), 3 if tile4 else 2, nt * 32))
            a("ds_read_b64_tr_b16 %s, v%d offset:%d" % (vr(10 + 4 * nt, 2), 3 if tile4 else 2, nt * 32 + 512))
        a("s_waitcnt lgkmcnt(0)")
        for nt in range(8):
            if tile4:
                n_ = 32 + nt
                a("s_add_u32 s%d, s%d, %d" % (S_T0, S_WSO, (n_ // 5) * 128 * 5120 + (n_ % 5) * 1024))
            else:
                a("s_add_u32 s%d, s%d, %d" % (S_T1, S_WL, nt))
                a("s_mul_i32 s%d, s%d, 52" % (S_T2, S_T1))
                a("s_lshr_b32 s%d, s%d, 8" % (S_T2, S_T2))
                a("s_mul_i32 s%d, s%d, 5" % (S_T3, S_T2))
                a("s_sub_u32 s%d, s%d, s%d" % (S_T1, S_T1, S_T3))
                a("s_mul_i32 s%d, s%d, %d" % (S_T2, S_T2, 128 * 5120))
                a("s_lshl_b32 s%d, s%d, 10" % (S_T1, S_T1))
                a("s_add_u32 s%d, s%d, s%d" % (S_T0, S_WSO, S_T2))
                a("s_add_u32 s%d, s%d, s%d" % (S_T0, S_T0, S_T1))
            a("buffer_store_dwordx4 %s, v4, %s, s%d offen%s" % (vr(8 + 4 * nt), sr(S_WS), S_T0, OSF))
        a("s_nop 1")
    r2_end("wofin")
    if "--wgt" in sys.argv:
        a("s_waitcnt vmcnt(0)")
        a("s_memrealtime s[98:99]")
        a("s_waitcnt lgkmcnt(0)")
        a("s_cmp_lg_u32 s%d, 0" % S_W)
        a("s_cbranch_scc1 L_wgt_e")
        a("s_lshl_b32 s64, s2, 3")
        a("s_add_u32 s64, s64, 0x4000000")
        a("v_mov_b32 v1, 0")
        a("v_mov_b32 v2, s100")
        a("v_mov_b32 v3, s98")
        a("buffer_store_dwordx2 v[2:3], v1, %s, s64 offen" % sr(S_WS))
        a.lab("L_wgt_e")
    stamp(a)
    stamp_dump(a)
    a.lab("L_k1_end")
    a("s_endpgm")
    a.L += rare

K2SP = 0
for x in sys.argv:
    if x.startswith("--k2sp="):
        K2SP = int(x.split("=")[1])
def gen_k2(a):
    a.lab("oproj_kernel")
    a("s_cmp_ge_u32 s2, 256")
    a("s_cbranch_scc1 L_k2_end")
    stamp(a)
    a("s_load_dwordx2 s[8:9], s[0:1], 80")
    a("s_load_dwordx2 s[10:11], s[0:1], 96")
    a("s_and_b32 s3, s2, 7")
    a("s_lshr_b32 s4, s2, 3")
    a("s_and_b32 s5, s4, 7")
    a("s_lshr_b32 s4, s4, 3")
    a("s_lshl_b32 s3, s3, 2")
    a("s_add_u32 s4, s4, s3")
    a("s_lshr_b32 s3, s4, 4")
    a("s_and_b32 s4, s4, 15")
    if "--k2same" in sys.argv:
        a("s_mov_b32 s42, s3"); a("s_mov_b32 s43, s4"); a("s_mov_b32 s44, s5")
    a("v_lshrrev_b32 v1, 6, v0")
    a("v_and_b32 v0, 63, v0")
    a("s_nop 0")
    a("v_readfirstlane_b32 s6, v1")
    a("s_waitcnt lgkmcnt(0)")
    srd(a, 12, 8, SZ_OUT)
    srd(a, 16, 10, WS_BYTES)
    a("v_lshlrev_b32 v1, 4, v0")
    if "--k2same" in sys.argv:
        a("s_mov_b32 s3, 0"); a("s_mov_b32 s4, 0"); a("s_mov_b32 s5, 0")
    a("s_lshl_b32 s20, s3, 4")
    a("s_add_u32 s20, s20, s4")
    a("s_lshl_b32 s20, s20, 7")
    a("s_lshl_b32 s21, s6, 5")
    a("s_add_u32 s20, s20, s21")
    a("s_mul_i32 s24, s20, 6144")
    a("s_add_u32 s25, s24, 4096")
    a("s_lshl_b32 s22, s3, 3")
    a("s_add_u32 s22, s22, s5")
    a("s_lshl_b32 s22, s22, 7")
    a("s_add_u32 s22, s22, s21")
    a("s_mul_i32 s26, s22, 5120")
    a("s_add_u32 s26, s26, 0x%x" % WS_WF)
    a("s_add_u32 s27, s26, 4096")
    ACC = 0
    FB = 8
    NB = 5
    def ar(b, n=4):
        return "a[%d:%d]" % (b, b + n - 1)
    NK = 32
    def loads(ks):
        b = FB + 44 * (ks % NB)
        L = []
        for f in range(6):
            L.append("buffer_load_dwordx4 %s, v1, s[16:19], s%d offen offset:%d" % (vr(b + 4 * f), 24 + f // 4, (f % 4) * 1024))
        for f in range(5):
            L.append("buffer_load_dwordx4 %s, v1, s[16:19], s%d offen offset:%d" % (vr(b + 24 + 4 * f), 26 + f // 4, (f % 4) * 1024))
        if "--k2noload" in sys.argv and ks >= 4:
            L = []
        L.append("s_add_u32 s24, s24, 6144")
        L.append("s_add_u32 s25, s25, 6144")
        L.append("s_add_u32 s26, s26, 5120")
        L.append("s_add_u32 s27, s27, 5120")
        return L
    for ks in range(NB - 1):
        for ins in loads(ks):
            a(ins)
    for ks in range(NK):
        nxt = ks + NB - 1
        ld = loads(nxt) if nxt < NK else []
        outstanding_after = min(NK - 1, ks + NB - 2) - ks
        a("s_waitcnt vmcnt(%d)" % (11 * outstanding_after))
        if ks in (0, 1, 8, 16, 24):
            stamp(a)
        b = FB + 44 * (ks % NB)
        li = 0
        m = 0
        for j in range(5):
            for i in range(6):
                if "--k2nomfma" not in sys.argv:
                    a("v_mfma_f32_16x16x32_bf16 %s, %s, %s, %s" % (ar(ACC + 4 * (j * 6 + i)), vr(b + 24 + 4 * j), vr(b + 4 * i), "0" if ks == 0 else ar(ACC + 4 * (j * 6 + i))))
                m += 1
                if K2SP:
                    if li < len(ld) and m % K2SP == 0:
                        a(ld[li]); li += 1
                elif li < len(ld) and m >= 2:
                    a(ld[li]); li += 1
        while li < len(ld):
            a(ld[li]); li += 1
    stamp(a)
    a("s_nop 15")
    a("s_mul_i32 s36, s6, 30720")
    a("v_add_u32 v2, s36, v1")
    for tl in range(30):
        a("ds_write_b128 v2, %s offset:%d" % (ar(ACC + 4 * tl), tl * 1024))
    a("s_lshl_b32 s36, s6, 10")
    a("v_add_u32 v2, s36, v1")
    a("v_add_u32 v5, 61440, v2")
    a("v_and_b32 v3, 15, v0")
    a("v_mul_u32_u24 v3, 2560, v3")
    a("v_lshrrev_b32 v4, 4, v0")
    a("v_lshl_add_u32 v3, v4, 3, v3")
    a("s_mul_i32 s37, s4, %d" % (96 * 2560))
    a("s_mul_i32 s38, s3, 1280")
    a("s_add_u32 s37, s37, s38")
    a("s_mul_i32 s38, s5, 160")
    a("s_add_u32 s37, s37, s38")
    a("s_waitcnt lgkmcnt(0)")
    a("s_barrier")
    stamp(a)
    for n in range(8):
        for src_ in range(4):
            a("ds_read_b128 %s, v%d offset:%d" % (vr(FB + 16 * n + 4 * src_), 2 if src_ < 2 else 5, (src_ % 2) * 30720 + n * 4096))
    for n in range(8):
        if n == 7:
            a("s_cmp_ge_u32 s6, 2")
            a("s_cbranch_scc1 L_k2_fin")
        a("s_add_u32 s39, s6, %d" % (4 * n))
        a("s_mul_i32 s40, s39, 43")
        a("s_lshr_b32 s40, s40, 8")
        a("s_mul_i32 s41, s40, 6")
        a("s_sub_u32 s41, s39, s41")
        a("s_mul_i32 s41, s41, %d" % (16 * 2560))
        a("s_lshl_b32 s40, s40, 5")
        a("s_add_u32 s41, s41, s40")
        a("s_add_u32 s41, s41, s37")
        a("s_waitcnt lgkmcnt(%d)" % min(15, 4 * (7 - n)))
        b = FB + 16 * n
        for r in range(4):
            a("v_add_f32 v%d, v%d, v%d" % (b + r, b + r, b + 4 + r))
            a("v_add_f32 v%d, v%d, v%d" % (b + 8 + r, b + 8 + r, b + 12 + r))
        for r in range(4):
            a("v_add_f32 v%d, v%d, v%d" % (b + r, b + r, b + 8 + r))
        a("v_cvt_pk_bf16_f32 v%d, v%d, v%d" % (b + 4, b, b + 1))
        a("v_cvt_pk_bf16_f32 v%d, v%d, v%d" % (b + 5, b + 2, b + 3))
        a("buffer_store_dwordx2 %s, v3, s[12:15], s41 offen" % vr(b + 4, 2))
    a.lab("L_k2_fin")
    stamp(a)
    stamp_dump(a, 6, "k2")
    a.lab("L_k2_end")
    a("s_endpgm")

def gen_stream(a):
    a.lab("stream_kernel")
    a("s_cmp_ge_u32 s2, 256")
    a("s_cbranch_scc1 L_st_end")
    a("s_lshr_b32 s3, s2, 7")
    a("s_and_b32 s4, s2, 127")
    a("s_mul_i32 s5, s3, 40")
    a("s_add_u32 s6, s0, s5")
    a("s_addc_u32 s7, s1, 0")
    a("s_load_dwordx4 s[8:11], s[6:7], 8")
    a("s_waitcnt lgkmcnt(0)")
    srd(a, 16, 8, SZ_KV)
    srd(a, 20, 10, SZ_KV)
    a("v_lshlrev_b32 v1, 4, v0")
    a("s_lshl_b32 s12, s4, 18")
    for i in range(16):
        fl = ""
        for x in sys.argv:
            if x.startswith("--sflag="):
                fl = " " + x.split("=")[1].replace("+", " ")
        a("buffer_load_dwordx4 %s, v1, s[16:19], s12 offen%s" % (vr(4 + 8 * (i % 8)), fl))
        a("buffer_load_dwordx4 %s, v1, s[20:23], s12 offen%s" % (vr(8 + 8 * (i % 8)), fl))
        a("s_add_u32 s12, s12, 16384")
    a("s_waitcnt vmcnt(0)")
    a.lab("L_st_end")
    a("s_endpgm")

def kd(a, name, vgpr, sgpr=102, acc=None):
    a.L.append(".p2align 6")
    a.L.append(".amdhsa_kernel %s" % name)
    a.L.append("  .amdhsa_next_free_vgpr %d" % vgpr)
    a.L.append("  .amdhsa_next_free_sgpr %d" % sgpr)
    a.L.append("  .amdhsa_accum_offset %d" % (acc if acc else (vgpr + 3) // 4 * 4))
    a.L.append("  .amdhsa_group_segment_fixed_size 0")
    a.L.append("  .amdhsa_kernarg_size 104")
    a.L.append("  .amdhsa_user_sgpr_count 2")
    a.L.append("  .amdhsa_user_sgpr_kernarg_segment_ptr 1")
    a.L.append("  .amdhsa_system_sgpr_workgroup_id_x 1")
    a.L.append(".end_amdhsa_kernel")

def main():
    hdr = open("cdna_kernels/%s.s.ref" % NAME).read().split("; Override launch geometry")[0]
    a = A()
    a.L.append(hdr.rstrip("\n"))
    if "--stream" in sys.argv:
        a.L.append("; @launch kernel=stream_kernel grid=(256,1,1) block=(1024,1,1) lds=0")
    a.L.append("; @launch kernel=attn_kernel grid=(256,1,1) block=(768,1,1) lds=%d" % LDS1)
    if "--twice" in sys.argv:
        a.L.append("; @launch kernel=attn_kernel grid=(256,1,1) block=(768,1,1) lds=%d" % LDS1)
    a.L.append("; @launch kernel=oproj_kernel grid=(256,1,1) block=(256,1,1) lds=126976")
    if "--k2twice" in sys.argv:
        a.L.append("; @launch kernel=oproj_kernel grid=(256,1,1) block=(256,1,1) lds=126976")
    a.L.append('.amdgcn_target "amdgcn-amd-amdhsa--gfx950"')
    a.L.append(".text")
    ks = [("attn_kernel", gen_k1), ("oproj_kernel", gen_k2)]
    if "--stream" in sys.argv:
        ks.append(("stream_kernel", gen_stream))
    for nm, g in ks:
        a.L.append(".globl %s" % nm)
        a.L.append(".p2align 8")
        a.L.append(".type %s,@function" % nm)
        g(a)
    a.L.append('.section .rodata,"a"')
    if "--stream" in sys.argv:
        kd(a, "stream_kernel", 72)
    kd(a, "attn_kernel", 168)
    kd(a, "oproj_kernel", 228 + 120, acc=228)
    args = [x for x in sys.argv[1:] if not x.startswith("--")]
    out = args[0] if args else "cdna_kernels/%s.s" % NAME
    open(out, "w").write(a.text())

main()
```
